```python
import torch

def _softmax(x, axis=-1):
    return torch.softmax(x, dim=axis)

def _gelu(x):
    return torch.nn.functional.gelu(x, approximate='tanh')

def _silu(x):
    return torch.nn.functional.silu(x)

def _sigmoid(x):
    return torch.sigmoid(x)

def _layernorm(x, axis=-1, eps=1e-05):
    m = x.mean(dim=axis, keepdim=True)
    v = x.var(dim=axis, keepdim=True, unbiased=False)
    return (x - m) / torch.sqrt(v + eps)

def _scatter_add(tgt, idx, src, axis=0):
    return tgt.clone().index_add_(axis, idx, src)

def _segment_sum(src, seg, n):
    out = torch.zeros((n,) + src.shape[1:], dtype=src.dtype)
    return out.index_add_(0, seg, src)

def _pad(x, pw):
    flat = tuple((v for pair in reversed(pw) for v in pair))
    return torch.nn.functional.pad(x, flat)
kernel_name = 'interleave_layers__memory_aug_recurrent_mem_tr__mixer_s_mlp__prompt'

def setup_inputs():

    _w = lambda a: (lambda t: t.to(torch.bfloat16) if t.is_floating_point() else t)(torch.as_tensor(a))

    def _A_setup():
        B, S, Dm = (1, 2048, 640)
        H, Dh = (32, 128)
        M, seg = (8, 32)
        seg = min(seg, S)
        S = S // seg * seg
        return {'x': _w((lambda *s: torch.randn(*s, dtype=torch.bfloat16) * 0.05)(B, S, Dm)), 'mem0': _w((lambda *s: torch.randn(*s, dtype=torch.bfloat16) * 0.8)(B, M, Dm)), 'Wq': _w((lambda *s: torch.randn(*s, dtype=torch.bfloat16) * 0.8)(Dm, H, Dh) * Dm ** (-0.5)), 'Wk': _w((lambda *s: torch.randn(*s, dtype=torch.bfloat16) * 0.8)(Dm, H, Dh) * Dm ** (-0.5)), 'Wv': _w((lambda *s: torch.randn(*s, dtype=torch.bfloat16) * 0.8)(Dm, H, Dh) * Dm ** (-0.5)), 'Wo': _w((lambda *s: torch.randn(*s, dtype=torch.bfloat16) * 0.8)(H, Dh, Dm) * (H * Dh) ** (-0.5)), 'seg_len': seg}
    _A_in = _A_setup()

    def _B_setup():
        B, S, D, F = (1, 2048, 640, 1728)
        return {'x': _w((lambda *s: torch.randn(*s, dtype=torch.bfloat16) * 0.05)(B, S, D)), 'w1': _w((lambda *s: torch.randn(*s, dtype=torch.bfloat16) * 0.8)(D, D) * D ** (-0.5)), 'w2': _w((lambda *s: torch.randn(*s, dtype=torch.bfloat16) * 0.8)(D, D) * D ** (-0.5)), 'w3': _w((lambda *s: torch.randn(*s, dtype=torch.bfloat16) * 0.8)(D, F) * D ** (-0.5)), 'w4': _w((lambda *s: torch.randn(*s, dtype=torch.bfloat16) * 0.8)(F, D) * F ** (-0.5))}
    _B_in = _B_setup()
    return {'A_x': _A_in['x'], 'A_mem0': _A_in['mem0'], 'A_Wq': _A_in['Wq'], 'A_Wk': _A_in['Wk'], 'A_Wv': _A_in['Wv'], 'A_Wo': _A_in['Wo'], 'A_seg_len': _A_in['seg_len'], 'B_x': _B_in['x'], 'B_w1': _B_in['w1'], 'B_w2': _B_in['w2'], 'B_w3': _B_in['w3'], 'B_w4': _B_in['w4']}

def reference(A_x, A_mem0, A_Wq, A_Wk, A_Wv, A_Wo, A_seg_len, B_x, B_w1, B_w2, B_w3, B_w4):

    def _A_ref(x, mem0, Wq, Wk, Wv, Wo, seg_len):
        B, S, Dm = x.shape
        H, Dh = (Wq.shape[1], Wq.shape[2])
        M = mem0.shape[1]
        scale = Dh ** (-0.5)
        n_seg = S // seg_len
        L = M + seg_len
        idx = torch.arange(L)
        mask = (idx[:, None] < M) | (idx[:, None] >= idx[None, :])
        mem = mem0
        outs = []
        for s in range(n_seg):
            xs = x[:, s * seg_len:(s + 1) * seg_len, :].clone()
            h = torch.concatenate([mem, xs], axis=1)
            q = torch.einsum('btd,dhe->bhte', h, Wq)
            k = torch.einsum('btd,dhe->bhte', h, Wk)
            v = torch.einsum('btd,dhe->bhte', h, Wv)
            scores = torch.einsum('bhqe,bhke->bhqk', q, k) * scale
            scores = torch.where(mask[None, None], scores, -1000000000.0)
            p = _softmax(scores, axis=-1)
            o = torch.einsum('bhqk,bhke->bhqe', p, v)
            o = torch.einsum('bhte,hed->btd', o, Wo)
            mem = o[:, :M, :].clone()
            outs.append(o[:, M:, :])
        return torch.concatenate(outs, axis=1)

    def _B_ref(x, w1, w2, w3, w4):
        B, S, D = x.shape
        h = _gelu(_layernorm(x, axis=-1) @ w1)
        c = D // 4
        g0 = _pad(h[:, :, 0 * c:1 * c], ((0, 0), (1, 0), (0, 0)))[:, :S, :]
        g1 = _pad(h[:, :, 1 * c:2 * c], ((0, 0), (0, 1), (0, 0)))[:, 1:, :]
        g2 = _pad(h[:, :, 2 * c:3 * c], ((0, 0), (2, 0), (0, 0)))[:, :S, :]
        g3 = _pad(h[:, :, 3 * c:], ((0, 0), (0, 2), (0, 0)))[:, 2:, :]
        hs = torch.concatenate([g0, g1, g2, g3], axis=-1) @ w2
        x1 = x + hs
        h2 = _gelu(_layernorm(x1, axis=-1) @ w3) @ w4
        return x1 + h2
    x = A_x
    x = x + _A_ref(_layernorm(x, axis=-1), A_mem0, A_Wq, A_Wk, A_Wv, A_Wo, A_seg_len)
    x = x + _B_ref(_layernorm(x, axis=-1), B_w1, B_w2, B_w3, B_w4)
    x = x + _A_ref(_layernorm(x, axis=-1), A_mem0, A_Wq, A_Wk, A_Wv, A_Wo, A_seg_len)
    x = x + _B_ref(_layernorm(x, axis=-1), B_w1, B_w2, B_w3, B_w4)
    return x
```

```python
import re

REG_RE = re.compile(r'^(-|abs\()?([vas])(?:(\d+)|\[(\d+):(\d+)\])\)?$')
TRANS = ('v_exp_f32','v_log_f32','v_rcp_f32','v_rsq_f32','v_sqrt_f32','v_sin_f32','v_cos_f32')

def regs_of(op):
    op = op.strip()
    if op == 'vcc': return [('s','vcc')]
    if op == 'exec': return [('s','exec')]
    if op == 'm0': return [('s','m0')]
    m = REG_RE.match(op)
    if not m: return []
    k = m.group(2)
    if m.group(3) is not None: return [(k,int(m.group(3)))]
    return [(k,i) for i in range(int(m.group(4)), int(m.group(5))+1)]

def split_ops(s):
    out=[];cur='';d=0
    for ch in s:
        if ch in '[(': d+=1
        if ch in '])': d-=1
        if ch==',' and d==0: out.append(cur.strip());cur=''
        else: cur+=ch
    if cur.strip(): out.append(cur.strip())
    return out

def mfma_passes(mn):
    if '32x32' in mn: return 8
    if '16x16' in mn: return 4
    raise ValueError(mn)

class Ins:
    __slots__=('text','mn','cls','dst','src','srcC','srcAB','passes','store_data','wide','sread')
    def __init__(self,text):
        self.text=text
        t=text.split(';')[0].strip()
        parts=t.split(None,1)
        self.mn=mn=parts[0]
        rest=parts[1] if len(parts)>1 else ''
        ops=split_ops(rest)
        ops2=[]
        for o in ops:
            ops2.append(o.split()[0] if o else o)
        mods=rest
        self.dst=[];self.src=[];self.srcC=[];self.srcAB=[];self.passes=0;self.store_data=[];self.wide=False
        R=[regs_of(o) for o in ops2]
        if mn.startswith('v_mfma'):
            self.cls='mfma'; self.passes=mfma_passes(mn)
            self.dst=R[0]; self.srcAB=R[1]+R[2]; self.srcC=R[3]; self.src=self.srcAB+self.srcC
        elif mn.startswith('v_smfmac'):
            self.cls='mfma'; self.passes=mfma_passes(mn)
            self.dst=R[0]; self.srcAB=R[1]+R[2]+R[3]; self.srcC=R[0]; self.src=self.srcAB+self.srcC
        elif mn.startswith('v_'):
            self.cls='valu'
            if mn.startswith('v_permlane') and 'swap' in mn:
                self.dst=R[0]+R[1]; self.src=R[0]+R[1]
            elif mn.startswith(('v_add_co','v_sub_co','v_addc_co','v_subb_co')):
                self.dst=R[0]+R[1]; self.src=sum(R[2:],[])
            elif mn=='v_nop':
                pass
            else:
                self.dst=R[0]; self.src=sum(R[1:],[])
                if mn.startswith(('v_fmac','v_dot2c','v_writelane')) or 'dpp' in mn: self.src=self.src+R[0]
                if mn.startswith('v_cndmask') and len(ops)==3: self.src=self.src+[('s','vcc')]
        elif mn.startswith(('buffer_','global_')):
            self.cls='vmem'
            islds = (' lds' in ' '+mods) or ('_lds_' in mn)
            if mn in ('buffer_inv','buffer_wbl2'): pass
            elif 'store' in mn:
                if mn.startswith('buffer_'): self.store_data=R[0]; self.src=sum(R,[])
                else: self.store_data=R[1]; self.src=sum(R,[])
                self.wide = ('x3' in mn or 'x4' in mn)
            elif 'atomic' in mn:
                self.src=sum(R,[])
                if 'sc0' in mods: self.dst=R[0]
            elif islds:
                self.src=sum(R,[])+[('s','m0')]; self.cls='vmemlds'
            else:
                self.dst=R[0]; self.src=sum(R[1:],[])
        elif mn.startswith('ds_'):
            self.cls='ds'
            if mn.startswith(('ds_read','ds_bpermute','ds_permute','ds_swizzle')): self.dst=R[0]; self.src=sum(R[1:],[])
            else: self.src=sum(R,[])
        elif mn.startswith('s_'):
            self.cls='salu'
            if mn.startswith(('s_cmp','s_cbranch','s_branch','s_waitcnt','s_nop','s_barrier','s_sleep','s_endpgm','s_setprio','s_bitcmp')):
                self.src=sum(R,[])
            else:
                self.dst=R[0] if R else []; self.src=sum(R[1:],[])
                if 'saveexec' in mn: self.dst=self.dst+[('s','exec')]
        else:
            raise ValueError('unknown instr '+text)

def states_of(ins):
    if ins.mn=='s_nop':
        return int(ins.text.split()[1],0)+1
    return 1

def need(prod, cons):
    n=0
    pd=set(prod.dst)
    if prod.cls=='valu':
        vd={r for r in pd if r[0]!='s'}; sd={r for r in pd if r[0]=='s'}
        if vd:
            if cons.cls=='mfma' and vd&set(cons.src): n=max(n,2)
            if cons.cls=='valu' and vd&set(cons.src):
                if cons.mn.startswith(('v_readlane','v_readfirstlane')): n=max(n,1)
                if 'dpp' in cons.mn or cons.mn.startswith('v_permlane'): n=max(n,2)
                if prod.mn.startswith(TRANS) and not cons.mn.startswith(TRANS): n=max(n,1)
                if prod.mn.startswith('v_permlane'): n=max(n,1)
                if prod.mn.startswith('v_dot2') and prod.mn!=cons.mn: n=max(n,3)
            if prod.mn.startswith(TRANS) and cons.cls in('vmem','ds') and vd&set(cons.src): n=max(n,1)
        if sd:
            if cons.cls=='valu' and sd&set(cons.src):
                n=max(n,4 if cons.mn.startswith(('v_readlane','v_writelane')) else 2)
            if cons.cls in('vmem','vmemlds') and sd&set(cons.src): n=max(n,5)
            if cons.cls=='salu' and sd&set(cons.src): n=max(n,1)
    elif prod.cls=='mfma':
        p=prod.passes
        big={4:8,8:12}[p]; ovl={4:6,8:10}[p]; war={4:3,8:7}[p]
        if cons.cls=='mfma':
            if pd&set(cons.srcAB): n=max(n,big)
            if pd&set(cons.srcC):
                if not (cons.srcC==prod.dst and cons.passes==p): n=max(n,ovl)
            elif pd&set(cons.dst): n=max(n,ovl)
        else:
            if pd&(set(cons.src)|set(cons.dst)): n=max(n,big)
            if cons.cls=='valu' and set(prod.srcC)&set(cons.dst): n=max(n,war)
    elif prod.cls=='vmem' and prod.wide:
        if set(prod.store_data)&set(cons.dst): n=max(n,2)
    elif prod.cls=='salu':
        if ('s','m0') in pd and cons.cls=='vmemlds': n=max(n,1)
    return n

class Asm:
    def __init__(self):
        self.lines=[]
        self.vm=[]
        self.lg=[]
        self.nlab=0
    def raw(self,s): self.lines.append(('r',s))
    def label(self,l): self.lines.append(('l',l))
    def newlabel(self,p='L'):
        self.nlab+=1; return f'{p}_{self.nlab}'
    def e(self,s,tag=None):
        for ln in s.strip().split('\n'):
            ln=ln.strip()
            if not ln: continue
            self.lines.append(('i',ln))
            mn=ln.split()[0]
            if mn.startswith(('buffer_','global_')): self.vm.append(tag)
            elif mn.startswith('ds_'): self.lg.append(tag)
    def wait_vm(self,tag=None):
        if tag is None:
            self.e('s_waitcnt vmcnt(0)'); self.vm=[]; return
        idx=[i for i,t in enumerate(self.vm) if t==tag]
        if not idx: return
        n=len(self.vm)-1-idx[-1]
        assert n<=63
        self.e(f's_waitcnt vmcnt({n})'); self.vm=self.vm[idx[-1]+1:]
    def wait_lg(self,tag=None):
        if tag is None:
            self.e('s_waitcnt lgkmcnt(0)'); self.lg=[]; return
        idx=[i for i,t in enumerate(self.lg) if t==tag]
        if not idx: return
        n=len(self.lg)-1-idx[-1]
        n=min(n,15)
        self.e(f's_waitcnt lgkmcnt({n})'); self.lg=self.lg[len(self.lg)-n:] if n else []
    def reset_track(self): self.vm=[]; self.lg=[]
    def text(self):
        out=[]; hist=[]
        def flush():
            n=0; d=0
            for p in reversed(hist):
                w=0
                if p.cls=='mfma': w={4:8,8:12}[p.passes]
                elif p.cls=='valu':
                    w=5 if any(r[0]=='s' for r in p.dst) else 2
                    if p.mn.startswith('v_dot2'): w=3
                elif p.cls=='vmem' and p.wide: w=2
                elif p.cls=='salu' and ('s','m0') in p.dst: w=1
                n=max(n,w-d); d+=states_of(p)
                if d>20: break
            return n
        def pad(n):
            while n>0:
                k=min(n,16); t=f's_nop {k-1}'; out.append('  '+t); hist.append(Ins(t)); n-=k
        for kind,s in self.lines:
            if kind=='r': out.append(s); continue
            if kind=='l':
                pad(flush()); out.append(s+':'); hist.clear(); continue
            ins=Ins(s)
            n=0; d=0
            for p in reversed(hist):
                w=need(p,ins)
                if w-d>n: n=w-d
                d+=states_of(p)
                if d>20: break
            if ins.mn.startswith(('s_cbranch','s_branch')):
                n=max(n,flush()-1)
            pad(n)
            out.append('  '+s); hist.append(ins)
            if len(hist)>40: del hist[:10]
        return '\n'.join(out)+'\n'

def vr(b,n=1,k='v'):
    return f'{k}{b}' if n==1 else f'{k}[{b}:{b+n-1}]'
def R(x,n=1):
    if x<256:
        assert x+n<=256
        return vr(x,n,'v')
    return vr(x-256,n,'a')
def sr(b,n=1): return vr(b,n,'s')
```

```python
from common import *
SCL=(128**-0.5)*1.4426950408889634
def gen_att(a):
    sH='s41'
    a.e(f's_lshl_b32 {sH}, s42, 2\ns_add_u32 {sH}, {sH}, {sWave}')
    va=VA(1,256)
    vL16=va.get(); vZ=va.get(); vFA=va.get(); vFB=va.get(); vF=va.get(); vKM=va.get(); vL8=va.get(); T=va.get(4,2)
    q=va.get(32,4); k=va.get(32,4); v=va.get(32,4); km=va.get(32,4); vm=va.get(8,4)
    bias=va.get(16,4); S=va.get(16,4); Sm=va.get(16,4); P=va.get(12,4)
    o=[q,q+16,k,k+16]
    a.e(f'v_lshlrev_b32 v{vL16}, 4, v0\nv_mov_b32 v{vZ}, 0\nv_lshlrev_b32 v{vL8}, 3, v0')
    a.e(f'v_and_b32 v{T}, 7, v0\nv_min_u32 v{T}, 5, v{T}\nv_and_b32 v{T+1}, 1, v{T}\nv_lshrrev_b32 v{T}, 1, v{T}\nv_lshlrev_b32 v{vFA}, 8, v{T}\nv_lshl_add_u32 v{vFA}, v{T+1}, 2, v{vFA}')
    lsel(a,'s43',[FLAG(0,ST_QKV),FLAG(1,ST_QKV)]); a.e(f's_lshl_b32 s44, {sH}, 3\ns_add_u32 s43, s43, s44\nv_add_u32 v{vFA}, s43, v{vFA}')
    lsel(a,'s43',[FLAG(0,ST_CH),FLAG(1,ST_CH)]); a.e(f's_lshl_b32 s44, {sH}, 4\ns_add_u32 s43, s43, s44')
    a.e(f'v_and_b32 v{vFB}, 3, v0\nv_lshlrev_b32 v{vFB}, 2, v{vFB}\nv_add_u32 v{vFB}, s43, v{vFB}')
    lsel(a,'s37',[FLAG(0,ST_ATT),FLAG(1,ST_ATT)]); a.e(f's_lshl_b32 s44, {sH}, 2\ns_add_u32 s37, s37, s44')
    lsel(a,'s32',QKV); a.e(f's_lshl_b32 s44, {sH}, 13\ns_add_u32 s32, s32, s44')
    lsel(a,'s36',O); a.e('s_add_u32 s36, s36, s44')
    lsel(a,'s33',KVM); a.e(f's_lshl_b32 s44, {sH}, 12\ns_add_u32 s33, s33, s44')
    a.e(f'v_lshrrev_b32 v{T}, 5, v0\nv_and_b32 v{vKM}, 7, v0\nv_lshlrev_b32 v{vKM}, 4, v{vKM}\nv_lshl_add_u32 v{vKM}, v{T}, 7, v{vKM}')
    a.e(f'v_and_b32 v{T+1}, 31, v0\nv_lshlrev_b32 v{T}, 2, v{T}\nv_sub_u32 v{T}, v{T+1}, v{T}\nv_mov_b32 v{T+1}, {hex(f2u(-1e30))}')
    for i in range(16):
        a.e(f'v_cmp_le_i32 vcc, {8*(i>>2)+(i&3)}, v{T}\nv_cndmask_b32 v{bias+i}, v{T+1}, v{vZ}, vcc')
    a.e(f's_mov_b32 s35, {hex(f2u(SCL))}\ns_mov_b32 {sItem}, 0')
    top=a.newlabel('att_top'); a.label(top); a.reset_track()
    a.e(f's_add_u32 {sNeed}, {sItem}, 1')
    poll_block(a,vFA,sNeed,vF,6)
    for m,reg in enumerate((q,k,v)):
        for h in range(2):
            a.e(f's_add_u32 s44, s32, {m*256*KB+h*4096}')
            for i in range(4): a.e(f'buffer_load_dwordx4 {vr(reg+16*h+4*i,4)}, v{vL16}, {WS}, s44 offen offset:{i*1024} sc1',tag=m)
    a.e(f's_add_u32 s32, s32, {QKVB}')
    a.wait_vm(1)
    for ks in range(8):
        a.e(f'v_mfma_f32_32x32x16_bf16 {vr(S,16)}, {vr(k+4*ks,4)}, {vr(q+4*ks,4)}, {vr(bias,16) if ks==0 else vr(S,16)}')
    poll_block(a,vFB,sNeed,vF,7,sleep=0)
    stamp(a,T,vZ,0)
    for ks in range(8): a.e(f'buffer_load_dwordx4 {vr(km+4*ks,4)}, v{vKM}, {WS}, s33 offen offset:{ks*256} sc1',tag=('km',ks))
    for et in range(4): a.e(f'buffer_load_dwordx2 {vr(vm+2*et,2)}, v{vL8}, {WS}, s33 offen offset:{2048+et*512} sc1',tag='vm')
    a.e(f's_add_u32 s33, s33, {KVMB}')
    m=T
    a.e(f'v_max3_f32 v{m}, v{S}, v{S+1}, v{S+2}')
    for i in range(3,15,2): a.e(f'v_max3_f32 v{m}, v{m}, v{S+i}, v{S+i+1}')
    a.e(f'v_max_f32 v{m}, v{m}, v{S+15}')
    for ks in range(8):
        a.wait_vm(('km',ks))
        a.e(f'v_mfma_f32_32x32x16_bf16 {vr(Sm,16)}, {vr(km+4*ks,4)}, {vr(q+4*ks,4)}, {"0" if ks==0 else vr(Sm,16)}')
    a.e(f'v_max3_f32 v{m}, v{m}, v{Sm}, v{Sm+1}\nv_max3_f32 v{m}, v{m}, v{Sm+2}, v{Sm+3}')
    a.e(f'v_mov_b32 v{m+1}, v{m}\nv_permlane32_swap_b32 v{m}, v{m+1}\nv_max_f32 v{m}, v{m}, v{m+1}\nv_mul_f32 v{m}, s35, v{m}')
    vals=[S+i for i in range(16)]+[Sm+i for i in range(4)]
    for x in vals: a.e(f'v_fma_f32 v{x}, v{x}, s35, -v{m}')
    for x in vals: a.e(f'v_exp_f32 v{x}, v{x}')
    cvt_pack(a,P,S,16); cvt_pack(a,P+8,Sm,4)
    a.wait_vm('vm')
    adds=[f'v_add_f32 v{m}, v{vals[0]}, v{vals[1]}']+[f'v_add_f32 v{m}, v{m}, v{x}' for x in vals[2:]]
    adds+=[f'v_mov_b32 v{m+1}, v{m}',f'v_permlane32_swap_b32 v{m}, v{m+1}',f'v_add_f32 v{m}, v{m}, v{m+1}',f'v_rcp_f32 v{m}, v{m}']
    def fill(n):
        for _ in range(n):
            if adds: a.e(adds.pop(0))
    for kt in range(2):
        for et in range(4):
            a.e(f'v_mfma_f32_32x32x16_bf16 {vr(o[et],16)}, {vr(v+8*et+4*kt,4)}, {vr(P+4*kt,4)}, {"0" if kt==0 else vr(o[et],16)}')
            fill(4)
    for et in range(4):
        a.e(f'v_mfma_f32_32x32x8_bf16 {vr(o[et],16)}, {vr(vm+2*et,2)}, {vr(P+8,2)}, {vr(o[et],16)}')
    fill(99)
    a.e('s_add_u32 s44, s36, 4096')
    for et in range(4):
        for i in range(16): a.e(f'v_mul_f32 v{o[et]+i}, v{o[et]+i}, v{m}')
        cvt_pack(a,km+8*et,o[et],16)
        for h in range(2):
            ks=2*et+h
            a.e(f'buffer_store_dwordx4 {vr(km+8*et+4*h,4)}, v{vL16}, {WS}, {"s36" if ks<4 else "s44"} offen offset:{(ks%4)*1024} sc1')
    a.e(f's_add_u32 s36, s36, {OB}')
    stamp(a,T,vZ,1)
    a.e(f's_add_u32 {sItem}, {sItem}, 1')
    a.wait_vm()
    publish(a,T,vZ,'s37',sItem,WS)
    a.e(f's_cmp_lt_u32 {sItem}, 64'); a.e(f's_cbranch_scc1 {top}')
    a.e('s_branch L_end')
```

```python
from common import *
import common
LWB=36864; MEMB=147456; QB=MEMB+10240; KBF=QB+2048; SX=KBF+2048
SCL=(128**-0.5)*1.4426950408889634
def fx(M,j2,ks): return M*20+j2*10+ks
def fz(t,ks): return 60+2*t+ks
WIN_A=[fx(M,j,0) for M in range(3) for j in range(2)]
WIN_B=[fx(1,1,9)]
WIN_C=[fz(7,1),fz(8,0),fz(8,1),fz(9,0),fz(9,1)]
LDSF=[fx(2,j,ks) for ks in range(1,10) for j in range(2)]
RES=[f for f in range(80) if f not in WIN_A+WIN_B+WIN_C+LDSF]
assert len(RES)==50 and len(LDSF)==18
POOL=64
def slot(i): return POOL+8*i
RLOC={}
for i,f in enumerate(RES): RLOC[f]= 256+8*i if i<32 else 112+8*(i-32)
sH,sCF,sKV,sKVM,sPMs,sPLs,sMw,sMr,sMz,sFo='s41','s42','s43','s44','s45','s46','s47','s48','s49','s37'
sPMr,sPLr='s32','s33'
def gen_chain(a):
    a.e(f's_lshr_b32 {sLayer}, {sRole}, 5\ns_and_b32 {sH}, {sRole}, 31')
    if OPT.get('layers',2)==1:
        a.e(f's_cmp_eq_u32 {sLayer}, 1'); a.e('s_cbranch_scc1 L_end')
    a.e(f's_lshl_b32 {sCF}, {sH}, 2\ns_add_u32 {sCF}, {sCF}, {sWave}\ns_mul_i32 {sCF}, {sCF}, {160*KB}\ns_add_u32 {sCF}, {sCF}, {CF}')
    a.e('v_lshlrev_b32 v1, 4, v0')
    for f in RES:
        a.e(f's_add_u32 s60, {sCF}, {f*2048}')
        a.e(f'buffer_load_dwordx4 {R(RLOC[f],4)}, v1, {WS}, s60 offen\nbuffer_load_dwordx4 {R(RLOC[f]+4,4)}, v1, {WS}, s60 offen offset:1024')
    a.e(f's_mul_i32 s61, {sWave}, {LWB}')
    for i,f in enumerate(LDSF):
        a.e(f's_add_u32 s60, {sCF}, {f*2048}\ns_add_u32 s62, s61, {i*2048}\ns_mov_b32 m0, s62')
        a.e(f'buffer_load_dwordx4 v1, {WS}, s60 offen lds\nbuffer_load_dwordx4 v1, {WS}, s60 offen offset:1024 lds')
    common.wait_all_registered(a,2,3,stop_slot=sLayer)
    a.e('s_cmp_ge_u32 s58, 32\ns_cselect_b32 s63, 1, 0')
    if OPT.get('slow',0): a.e('s_mov_b32 s63, 0')
    a.e(f's_lshl_b32 s60, {sWave}, 1\ns_add_u32 s60, s60, s63')
    for w in range(4):
        for fast in (0,1):
            a.e(f's_cmp_eq_u32 s60, {2*w+fast}'); a.e(f's_cbranch_scc1 CH_{w}_{fast}')
    a.e('s_branch L_end')
    for w in range(4):
        for fast in (0,1):
            a.label(f'CH_{w}_{fast}'); a.reset_track()
            chain_wave(a,w,fast)

def chain_wave(a,w,fast):
    RS='' if fast else ' sc1'
    va=VA(1,POOL)
    vL16=va.get(); assert vL16==1
    vIdx=va.get(); vLW=va.get(); vLM=va.get(); vQW=va.get(); vQR=va.get(); vKR=va.get(); vSX=va.get(); vOW=va.get()
    vVX=va.get(); vPM=va.get(); vPL=va.get(); vRO=va.get(); vFA=va.get(); vF=va.get(); vVM=va.get(); vZ=va.get()
    tm=va.get(6,2); selr=va.get(4,4)
    ar=va.get(12,4); acc=va.get(24,4)
    assert acc==ar+12
    T=tm
    c,g=T,T+1
    a.e(f'v_and_b32 v{c}, 15, v0\nv_lshrrev_b32 v{g}, 4, v0\nv_mov_b32 v{vZ}, 0')
    a.e(f'v_bfe_u32 v{T+2}, v0, 1, 1\nv_mul_u32_u24 v{vIdx}, 0xaaaa, v{T+2}\nv_add_u32 v{vIdx}, 0x4444, v{vIdx}')
    a.e(f'v_add_u32 v{vLW}, {w*LWB}, v{vL16}\nv_add_u32 v{vLM}, {MEMB}, v{vL16}')
    a.e(f'v_lshrrev_b32 v{T+3}, 3, v{c}\nv_lshlrev_b32 v{vQW}, 8, v{T+3}\nv_lshl_add_u32 v{vQW}, v{T+2}, 7, v{vQW}\nv_lshl_add_u32 v{vQW}, v{g}, 5, v{vQW}')
    a.e(f'v_and_b32 v{T+4}, 1, v0\nv_lshl_add_u32 v{vQW}, v{T+4}, 2, v{vQW}\nv_bfe_u32 v{T+5}, v0, 2, 1\nv_lshl_add_u32 v{vQW}, v{T+5}, 3, v{vQW}\nv_add_u32 v{vQW}, {QB+w*512}, v{vQW}')
    a.e(f'v_and_b32 v{vQR}, 7, v0\nv_lshlrev_b32 v{vQR}, 4, v{vQR}\nv_lshl_add_u32 v{vQR}, v{g}, 7, v{vQR}\nv_add_u32 v{vSX}, {SX}, v{vQR}\nv_add_u32 v{vQR}, {QB}, v{vQR}')
    if w<2:
        a.e(f'v_and_b32 v{vKR}, 7, v0\nv_lshl_add_u32 v{vKR}, v{T+3}, 4, v{vKR}\nv_add_u32 v{vKR}, {8*w}, v{vKR}\nv_lshlrev_b32 v{vKR}, 4, v{vKR}\nv_lshl_add_u32 v{vKR}, v{g}, 9, v{vKR}')
    else:
        a.e(f'v_lshrrev_b32 v{vKR}, 2, v{c}\nv_lshl_add_u32 v{vKR}, v{vKR}, 1, v{T+4}\nv_lshlrev_b32 v{vKR}, 4, v{vKR}\nv_lshl_add_u32 v{vKR}, v{g}, 7, v{vKR}\nv_add_u32 v{vKR}, {KBF}, v{vKR}')
    a.e(f'v_bfe_u32 v{vOW}, v0, 1, 2\nv_lshl_add_u32 v{vOW}, v{vOW}, 2, v{T+4}\nv_bfe_u32 v{vVX}, v0, 4, 1\nv_lshl_add_u32 v{vOW}, v{vVX}, 1, v{vOW}')
    a.e(f'v_lshrrev_b32 v{vVM}, 5, v0\nv_lshl_add_u32 v{vOW}, v{vVM}, 4, v{vOW}\nv_lshlrev_b32 v{vOW}, 4, v{vOW}\nv_add_u32 v{vOW}, {QB+((w>>1)*64+2*(w&1)*16)*16}, v{vOW}')
    a.e(f'v_lshlrev_b32 v{vVM}, 8, v{vVM}\nv_lshl_add_u32 v{vVM}, v{c}, 3, v{vVM}\nv_lshl_add_u32 v{vVM}, v{vVX}, 2, v{vVM}\nv_add_u32 v{vVM}, {2048+w*512}, v{vVM}')
    a.e(f'v_lshlrev_b32 v{vVX}, 4, v{c}\nv_lshl_add_u32 v{vVX}, v{g}, 9, v{vVX}\nv_add_u32 v{vVX}, {256*KB+w*2048}, v{vVX}')
    a.e(f'v_lshrrev_b32 v{vPM}, 1, v{c}\nv_lshlrev_b32 v{vPM}, 13, v{vPM}\nv_lshl_add_u32 v{vPM}, v{g}, 5, v{vPM}\nv_lshl_add_u32 v{vPM}, v{T+4}, 4, v{vPM}\nv_add_u32 v{vPM}, {w*65536}, v{vPM}')
    a.e(f'v_lshlrev_b32 v{vPL}, 12, v{g}\nv_lshl_add_u32 v{vPL}, v{c}, 4, v{vPL}\nv_add_u32 v{vPL}, {w*16384}, v{vPL}')
    if w==0:
        a.e(f'v_and_b32 v{vRO}, 7, v0\nv_lshl_add_u32 v{vRO}, v{vRO}, 1, v{T+3}\nv_lshlrev_b32 v{vRO}, 4, v{vRO}\nv_lshl_add_u32 v{vRO}, v{g}, 3, v{vRO}')
        a.e(f's_lshl_b32 s60, {sH}, 8\nv_add_u32 v{vRO}, s60, v{vRO}')
        for i in range(4):
            a.e(f'v_mov_b32 v{selr+i}, 0\nv_cmp_eq_u32 vcc, {2*i}, v{c}\nv_mov_b32 v{vF}, 0x3f80\nv_cndmask_b32 v{selr+i}, v{selr+i}, v{vF}, vcc')
            a.e(f'v_cmp_eq_u32 vcc, {2*i+1}, v{c}\nv_mov_b32 v{vF}, 0x3f800000\nv_cndmask_b32 v{selr+i}, v{selr+i}, v{vF}, vcc')
    if w==1:
        a.e(f'v_lshlrev_b32 v{vRO}, 8, v{T+3}\nv_lshl_add_u32 v{vRO}, v{T+5}, 5, v{vRO}\nv_and_b32 v{vF}, 3, v0\nv_lshl_add_u32 v{vRO}, v{vF}, 2, v{vRO}')
        a.e(f's_lshr_b32 s60, {sH}, 3\ns_lshl_b32 s60, s60, 9\ns_bfe_u32 s61, {sH}, 0x20001\ns_lshl_b32 s61, s61, 6\ns_add_u32 s60, s60, s61\ns_and_b32 s61, {sH}, 1\ns_lshl_b32 s61, s61, 4\ns_add_u32 s60, s60, s61\ns_add_u32 s60, s60, 8192')
        a.e(f'v_add_u32 v{vRO}, s60, v{vRO}')
        a.e(f'v_mov_b32 v{selr}, 0\nv_cmp_eq_u32 vcc, 0, v{c}\nv_mov_b32 v{vF}, 0x3f80\nv_cndmask_b32 v{selr}, v{selr}, v{vF}, vcc')
        a.e(f'v_cmp_eq_u32 vcc, 1, v{c}\nv_mov_b32 v{vF}, 0x3f800000\nv_cndmask_b32 v{selr}, v{selr}, v{vF}, vcc')
        for i in range(1,4): a.e(f'v_mov_b32 v{selr+i}, v{selr}')
    lsel(a,'s60',[FLAG(0,ST_QKV),FLAG(1,ST_QKV)],256)
    a.e(f's_lshl_b32 s61, {sH}, 3\ns_add_u32 s60, s60, s61')
    a.e(f'v_lshlrev_b32 v{vFA}, 2, v{T+4}\nv_lshl_add_u32 v{vFA}, v{T+2}, 8, v{vFA}\nv_add_u32 v{vFA}, s60, v{vFA}')
    lsel(a,sFo,[FLAG(0,ST_CH),FLAG(1,ST_CH)],4*w); a.e(f's_lshl_b32 s61, {sH}, 4\ns_add_u32 {sFo}, {sFo}, s61')
    lsel(a,sKV,QKV,256*KB); a.e(f's_lshl_b32 s61, {sH}, 13\ns_add_u32 {sKV}, {sKV}, s61')
    lsel(a,sKVM,KVM); a.e(f's_lshl_b32 s61, {sH}, 12\ns_add_u32 {sKVM}, {sKVM}, s61')
    lsel(a,sPMs,[PM(0),PM(1)]); a.e(f's_lshl_b32 s61, {sH}, 13\ns_add_u32 {sPMr}, {sPMs}, s61\ns_lshl_b32 s61, {sH}, 8\ns_add_u32 {sPMs}, {sPMs}, s61')
    lsel(a,sPLs,[PL(0),PL(1)]); a.e(f's_lshl_b32 s61, {sH}, 11\ns_add_u32 {sPLr}, {sPLs}, s61')
    a.e(f's_lshr_b32 s61, {sH}, 2\ns_lshl_b32 s61, s61, 8\ns_add_u32 {sPLs}, {sPLs}, s61\ns_and_b32 s61, {sH}, 3\ns_lshl_b32 s61, s61, 2\ns_add_u32 {sPLs}, {sPLs}, s61')
    lsel(a,'s34',[MEMR(0),MEMR(1)])
    a.e(f's_mov_b32 s35, {hex(f2u(SCL))}')
    where={}
    def sload(f,si,tag):
        a.e(f's_add_u32 s60, {sCF}, {f*2048}')
        a.e(f'buffer_load_dwordx4 {vr(slot(si),4)}, v{vL16}, {WS}, s60 offen\nbuffer_load_dwordx4 {vr(slot(si)+4,4)}, v{vL16}, {WS}, s60 offen offset:1024',tag=tag)
        where[f]=(slot(si),'vm',tag)
    def lload(f,si):
        o=LDSF.index(f)*2048
        a.e(f'ds_read_b128 {vr(slot(si),4)}, v{vLW} offset:{o}\nds_read_b128 {vr(slot(si)+4,4)}, v{vLW} offset:{o+1024}',tag=('w',f))
        where[f]=(slot(si),'lg',('w',f))
    def smf(d,A,f):
        if f in RLOC: B=R(RLOC[f],8)
        else:
            r,kind,tag=where[f]
            (a.wait_vm if kind=='vm' else a.wait_lg)(tag)
            B=vr(r,8)
        a.e(f'v_smfmac_f32_16x16x64_bf16 {vr(d,4)}, {vr(A,4)}, {B}, v{vIdx}')
    def zero(b,n):
        for i in range(0,n,2): a.e(f'v_mov_b64 {vr(b+i,2)}, 0')
    def winA():
        for i,f in enumerate(WIN_A): sload(f,i,'A')
        a.e(f'buffer_load_dword v{vF}, v{vFA}, {WS}, 0 offen sc1',tag='A')
    a.e(f's_mov_b32 {sItem}, 0')
    winA()
    if w>=2:
        a.e(f'v_lshrrev_b32 v{T+3}, 2, v{c}\nv_lshl_add_u32 v{T+3}, v{T+3}, 1, v{T+4}\nv_mul_u32_u24 v{T+3}, 1280, v{T+3}\nv_lshl_add_u32 v{T+3}, v{g}, 5, v{T+3}\nv_lshl_add_u32 v{T+3}, v{T+2}, 4, v{T+3}')
        for i in range(5): a.e(f'buffer_load_dwordx4 {vr(acc+4*i,4)}, v{T+3}, {MEM0}, 0 offen offset:{(5*(w-2)+i)*128}')
        a.wait_vm()
        for i in range(5): a.e(f'ds_write_b128 v{vLM}, {vr(acc+4*i,4)} offset:{(5*(w-2)+i)*1024}')
    else: a.wait_vm()
    top=a.newlabel('ch_top')
    a.label(top)
    zero(acc,24)
    a.e('s_waitcnt vmcnt(0) lgkmcnt(0)'); a.reset_track()
    a.e('s_barrier')
    stamp(a,T,vZ,0)
    def ard(ks): a.e(f'ds_read_b128 {vr(ar+4*(ks%3),4)}, v{vLM} offset:{ks*1024}',tag=('a',ks))
    ard(0); ard(1)
    last=a.newlabel('ch_kvok')
    for ks in range(10):
        if ks+2<10: ard(ks+2)
        a.wait_lg(('a',ks))
        A=ar+4*(ks%3)
        for M in range(3):
            for j in range(2):
                smf(acc+8*M+4*j,A,fx(M,j,ks))
        if ks+1<10:
            lload(fx(2,0,ks+1),0); lload(fx(2,1,ks+1),1)
        if ks==0:
            ok=a.newlabel('ch_ok')
            a.e(f's_add_u32 {sNeed}, {sItem}, 1')
            flag_check(a,vF,sNeed); a.e(f's_cbranch_scc1 {ok}')
            poll_block(a,vFA,sNeed,vF,8)
            a.label(ok)
            if w<2:
                a.e(f's_add_u32 s61, {sKV}, 4096')
                for k2 in range(4):
                    a.e(f'buffer_load_dwordx4 {vr(slot(2)+4*k2,4)}, v{vKR}, {WS}, {sKV if k2<2 else "s61"} offen offset:{(k2%2)*2048} sc1 nt',tag='kx')
            for j in range(2):
                a.e(f'buffer_load_dwordx4 {vr(slot(4)+4*j,4)}, v{vVX}, {WS}, {sKV} offen offset:{j*256} sc1 nt',tag='vx')
            a.e(f's_add_u32 {sKV}, {sKV}, {QKVB}')
            sload(WIN_B[0],5,'B')
    sload(WIN_C[0],0,'C0'); sload(WIN_C[1],1,'C1'); sload(WIN_C[2],5,'C2')
    stamp(a,T,vZ,1)
    for i in range(6): a.e(f'v_pk_add_f32 {vr(acc+4*i,2)}, {vr(acc+4*i,2)}, {vr(acc+4*i+2,2)}')
    for M in range(2):
        for rho in range(2):
            a.e(f'v_cvt_pk_bf16_f32 v{T+2*M+rho}, v{acc+8*M+rho}, v{acc+8*M+4+rho}')
    for M in range(2):
        for rho in range(2):
            a.e(f'ds_write_b32 v{vQW}, v{T+2*M+rho} offset:{M*2048+rho*16}')
    vm=[acc+16,acc+20]
    for j in range(2):
        a.e(f'v_cvt_pk_bf16_f32 v{vm[j]}, v{vm[j]}, v{vm[j]+1}\nv_mov_b32 v{vm[j]+1}, 0')
        a.e(f'buffer_store_dword v{vm[j]}, v{vVM}, {WS}, {sKVM} offen offset:{j*128} sc1',tag='pub')
    a.wait_lg()
    a.e('s_barrier')
    if w==3:
        for i in range(2): a.e(f'ds_read_b128 {vr(slot(2)+4*i,4)}, v{vLM} offset:{KBF-MEMB+i*1024}')
        a.wait_lg()
        for i in range(2): a.e(f'buffer_store_dwordx4 {vr(slot(2)+4*i,4)}, v{vL16}, {WS}, {sKVM} offen offset:{i*1024} sc1',tag='pub')
    a.e(f's_add_u32 {sKVM}, {sKVM}, {KVMB}')
    fin=a.newlabel('ch_fin')
    a.e(f's_cmp_ge_u32 {sItem}, 63'); a.e(f's_cbranch_scc1 {fin}')
    if w<3:
        for k2 in range(4): a.e(f'ds_read_b128 {vr(acc+4*k2,4)}, v{vQR} offset:{k2*512}',tag=('q',k2))
        if w==2:
            for k2 in range(4): a.e(f'ds_read_b128 {vr(slot(2)+4*k2,4)}, v{vKR} offset:{k2*512}',tag=('q',3))
            a.wait_lg()
        else: a.wait_vm('kx')
        for k2 in range(4):
            a.wait_lg(('q',k2))
            a.e(f'v_mfma_f32_16x16x32_bf16 {vr(ar,4)}, {vr(slot(2)+4*k2,4)}, {vr(acc+4*k2,4)}, {"0" if k2==0 else vr(ar,4)}')
        a.e(f'ds_write_b128 v{vSX}, {vr(ar,4)} offset:{w*512}')
    sload(WIN_C[3],2,'C3'); sload(WIN_C[4],3,'C4')
    a.wait_lg()
    a.e('s_barrier')
    s=acc
    a.e(f'ds_read_b128 {vr(s,4)}, v{vSX}\nds_read_b128 {vr(s+4,4)}, v{vSX} offset:512\nds_read_b64 {vr(s+8,2)}, v{vSX} offset:1024')
    a.wait_lg()
    m=T
    a.e(f'v_max3_f32 v{m}, v{s}, v{s+1}, v{s+2}\nv_max3_f32 v{m+1}, v{s+3}, v{s+4}, v{s+5}\nv_max3_f32 v{m+2}, v{s+6}, v{s+7}, v{s+8}')
    a.e(f'v_max3_f32 v{m}, v{m}, v{m+1}, v{s+9}\nv_max_f32 v{m}, v{m}, v{m+2}')
    def xl(op,x,t):
        a.e(f'v_mov_b32 v{t}, v{x}\nv_permlane32_swap_b32 v{x}, v{t}\n{op} v{x}, v{x}, v{t}')
        a.e(f'v_mov_b32 v{t}, v{x}\nv_permlane16_swap_b32 v{x}, v{t}\n{op} v{x}, v{x}, v{t}')
    xl('v_max_f32',m,m+1)
    a.e(f'v_mul_f32 v{m}, s35, v{m}')
    for i in range(10): a.e(f'v_fma_f32 v{s+i}, v{s+i}, s35, -v{m}')
    for i in range(10): a.e(f'v_exp_f32 v{s+i}, v{s+i}')
    P=ar; Pm=ar+4; o=acc+8
    cvt_pack(a,P,s,8)
    a.e(f'v_cvt_pk_bf16_f32 v{Pm}, v{s+8}, v{s+9}\nv_mov_b32 v{Pm+1}, 0')
    a.e(f'v_add_f32 v{m}, v{s+8}, v{s+9}')
    a.wait_vm('vx')
    for j in range(2): a.e(f'v_mfma_f32_16x16x32_bf16 {vr(o+4*j,4)}, {vr(slot(4)+4*j,4)}, {vr(P,4)}, 0')
    for j in range(2): a.e(f'v_mfma_f32_16x16x16_bf16 {vr(o+4*j,4)}, {vr(vm[j],2)}, {vr(Pm,2)}, {vr(o+4*j,4)}')
    for i in range(8): a.e(f'v_add_f32 v{m}, v{m}, v{s+i}')
    xl('v_add_f32',m,m+1)
    a.e(f'v_rcp_f32 v{m}, v{m}')
    for i in range(8): a.e(f'v_mul_f32 v{o+i}, v{o+i}, v{m}')
    cvt_pack(a,T+2,o,8)
    a.e(f'ds_write_b128 v{vOW}, {vr(T+2,4)}')
    za=[ar+8+4*i for i in range(7)]+[slot(4),slot(4)+4,T+2]
    zero(ar+8,28); zero(slot(4),8); zero(T+2,4)
    a.wait_lg()
    a.e('s_barrier')
    stamp(a,T,vZ,2)
    a.e(f'ds_read_b128 {vr(ar,4)}, v{vLM} offset:{QB-MEMB}',tag='z0'); a.e(f'ds_read_b128 {vr(ar+4,4)}, v{vLM} offset:{QB-MEMB+1024}',tag='z1')
    a.wait_lg()
    a.e(f's_and_b32 s60, {sItem}, 1\ns_lshl_b32 s61, s60, 18\ns_add_u32 s64, {sPMs}, s61\ns_add_u32 s66, {sPMr}, s61\ns_lshl_b32 s61, s60, 16\ns_add_u32 s65, {sPLs}, s61\ns_add_u32 s67, {sPLr}, s61')
    def fin_pair(p):
        x,y=za[2*p],za[2*p+1]
        a.e(f'v_pk_add_f32 {vr(x,2)}, {vr(x,2)}, {vr(x+2,2)}\nv_pk_add_f32 {vr(y,2)}, {vr(y,2)}, {vr(y+2,2)}')
        if p==0:
            a.e(f'v_cvt_pk_bf16_f32 v{x+2}, v{x+1}, v{y+1}\nv_cvt_pk_bf16_f32 v{x}, v{x}, v{y}\nv_min_u32 v{y}, -2, v{x+2}\nv_min_u32 v{x}, -2, v{x}')
        else:
            d0,d1=(za[0]+p,za[1]+p) if p<4 else (x+2,x+3)
            a.e(f'v_cvt_pk_bf16_f32 v{d0}, v{x}, v{y}\nv_cvt_pk_bf16_f32 v{d1}, v{x+1}, v{y+1}\nv_min_u32 v{d0}, -2, v{d0}\nv_min_u32 v{d1}, -2, v{d1}')
    for p in range(5):
        for ks in range(2):
            for t in (2*p,2*p+1): smf(za[t],ar+4*ks,fz(t,ks))
        if p>=1: fin_pair(p-1)
        if p==4:
            a.e(f'buffer_store_dwordx4 {vr(za[0],4)}, v{vPM}, {WS}, s64 offen{RS}\nbuffer_store_dwordx4 {vr(za[1],4)}, v{vPM}, {WS}, s64 offen offset:128{RS}',tag='ps')
    fin_pair(4)
    a.e(f'buffer_store_dword v{za[8]+2}, v{vPL}, {WS}, s65 offen{RS}\nbuffer_store_dword v{za[8]+3}, v{vPL}, {WS}, s65 offen offset:2048{RS}',tag='ps')
    stamp(a,T,vZ,3)
    a.e(f's_add_u32 {sItem}, {sItem}, 1')
    a.e(f's_and_b32 s60, {sItem}, 3\ns_lshl_b32 s60, s60, 14\ns_add_u32 {sMw}, s34, s60\ns_xor_b32 s60, s60, 0x8000\ns_add_u32 {sMz}, s34, s60')
    def maxtree(b,n,t):
        a.e(f'v_max3_u32 v{t}, v{b}, v{b+1}, v{b+2}')
        i=3
        while i<n:
            if i+1<n: a.e(f'v_max3_u32 v{t}, v{t}, v{b+i}, v{b+i+1}'); i+=2
            else: a.e(f'v_max_u32 v{t}, v{t}, v{b+i}'); i+=1
        a.e(f'v_cmp_eq_u32 vcc, -1, v{t}')
    def retry(L,err):
        D=a.newlabel('ch_d')
        a.e(f's_cbranch_vccz {D}')
        a.e(f's_add_u32 {sCnt}, {sCnt}, 1\ns_cmp_lt_u32 {sCnt}, {POLL_LIMIT}'); a.e(f's_cbranch_scc1 {L}')
        a.e(f's_mov_b32 {sErr}, {err}'); a.e('s_branch L_fail')
        a.label(D)
    a.e(f's_mov_b32 {sCnt}, 0')
    if w<2:
        n=8 if w==0 else 2; sb='s66' if w==0 else 's67'
        a.e(f's_add_u32 s68, {sb}, 4096')
        L=a.newlabel('ch_r'); a.label(L)
        for i in range(n): a.e(f'buffer_load_dwordx4 {vr(ar+4*i,4)}, v{vL16}, {WS}, {sb if i<4 else "s68"} offen offset:{(i%4)*1024} sc1')
        a.wait_vm()
        D4=T+2
        for i in range(n): a.e(f'v_mfma_f32_16x16x32_bf16 {vr(D4,4)}, {vr(selr,4)}, {vr(ar+4*i,4)}, {"0" if i==0 else vr(D4,4)}')
        maxtree(ar,4*n,T)
        retry(L,9)
        cvt_pack(a,T,D4,4)
        a.e(f'v_min_u32 v{T}, -2, v{T}\nv_min_u32 v{T+1}, -2, v{T+1}')
        if w==0:
            a.e('s_mov_b32 exec_hi, 0')
            a.e(f'buffer_store_dwordx2 {vr(T,2)}, v{vRO}, {WS}, {sMw} offen{RS}')
        else:
            a.e('s_mov_b64 exec, 0xffff')
            a.e(f'buffer_store_dword v{T}, v{vRO}, {WS}, {sMw} offen{RS}')
        a.e(f'v_mov_b64 {vr(T+2,2)}, -1')
        a.e((f'buffer_store_dwordx2 {vr(T+2,2)}' if w==0 else f'buffer_store_dword v{T+2}')+f', v{vRO}, {WS}, {sMz} offen{RS}')
        a.e('s_mov_b64 exec, -1')
        stamp(a,T,vZ,4)
        winA()
        a.e(f'v_mov_b64 {vr(T+2,2)}, -1\nv_mov_b64 {vr(T+4,2)}, -1')
        for i in range(n): a.e(f'buffer_store_dwordx4 {vr(T+2,4)}, v{vL16}, {WS}, {sb if i<4 else "s68"} offen offset:{(i%4)*1024}{RS}')
        publish(a,T,vZ,sFo,sItem,WS)
    else:
        a.wait_vm('pub')
        publish(a,T,vZ,sFo,sItem,WS)
        winA()
        a.e(f's_add_u32 s68, {sMw}, {5*(w-2)*1024}\ns_add_u32 s69, s68, 4096')
        L=a.newlabel('ch_m'); a.label(L)
        for i in range(5): a.e(f'buffer_load_dwordx4 {vr(acc+4*i,4)}, v{vL16}, {WS}, {"s68" if i<4 else "s69"} offen offset:{(i%4)*1024} sc1')
        a.wait_vm()
        maxtree(acc,20,T)
        retry(L,10)
        for i in range(5): a.e(f'ds_write_b128 v{vLM}, {vr(acc+4*i,4)} offset:{(5*(w-2)+i)*1024}')
        stamp(a,T,vZ,4)
    a.e(f's_branch {top}')
    a.label(fin)
    a.e('s_waitcnt vmcnt(0)')
    publish(a,T,vZ,sFo,64,WS)
    a.e('s_branch L_end')
```

```python
from asmb import *
from layout import *
from pre import srd, sdiv, KARG
import struct
def f2u(x): return struct.unpack('<I',struct.pack('<f',x))[0]
WS='s[4:7]'; OUT='s[8:11]'; DBG='s[12:15]'; MEM0='s[16:19]'; WST='s[24:27]'
sRole,sWave='s2','s3'
sItem,sPref,sPend,sNeed='s28','s29','s30','s31'
sCnt,sLayer,sErr='s38','s39','s40'
POLL_LIMIT=40000
OPT={'ts':False}
class VA:
    def __init__(self,start=1,end=256): self.n=start; self.end=end
    def get(self,n=1,al=None):
        al=al or (2 if n>=2 else 1)
        self.n=(self.n+al-1)//al*al
        r=self.n; self.n+=n
        assert self.n<=self.end, 'out of vgprs'
        return r
def flag_check(a,vF,need):
    a.e(f'v_cmp_le_u32 vcc, {need}, v{vF}')
    a.e('s_cmp_eq_u64 vcc, -1')
def poll_block(a,vAddr,need,vF,err,sleep=1):
    L=a.newlabel('poll'); D=a.newlabel('polld')
    a.e(f's_mov_b32 {sCnt}, 0')
    a.label(L)
    a.e(f'buffer_load_dword v{vF}, v{vAddr}, {WS}, 0 offen sc1')
    a.e('s_waitcnt vmcnt(0)')
    flag_check(a,vF,need)
    a.e(f's_cbranch_scc1 {D}')
    if sleep: a.e(f's_sleep {sleep}')
    a.e(f's_add_u32 {sCnt}, {sCnt}, 1\ns_cmp_lt_u32 {sCnt}, {POLL_LIMIT}')
    a.e(f's_cbranch_scc1 {L}')
    a.e(f's_mov_b32 {sErr}, {err}')
    a.e('s_branch L_fail')
    a.label(D)
    a.vm=[]
def publish(a,vT,vZ,sOff,val,srdn=WST):
    a.e(f'v_mov_b32 v{vT}, {val}')
    a.e('s_mov_b64 exec, 1')
    a.e(f'buffer_store_dword v{vT}, v{vZ}, {srdn}, {sOff} offen sc1')
    a.e('s_mov_b64 exec, -1')
def stamp(a,vT,vZ,slot,item=sItem):
    if not OPT['ts']: return
    a.e('s_memrealtime s[98:99]' if OPT['ts']==1 else 's_memtime s[98:99]')
    a.e(f's_lshl_b32 s97, {sRole}, 2\ns_add_u32 s97, s97, {sWave}\ns_lshl_b32 s97, s97, 6\ns_add_u32 s97, s97, {item}\ns_lshl_b32 s97, s97, 5\ns_add_u32 s97, s97, {TSB+slot*4}')
    a.e('s_waitcnt lgkmcnt(0)'); a.lg=[]
    a.e(f'v_mov_b32 v{vT}, s98')
    a.e('s_mov_b64 exec, 1')
    a.e(f'buffer_store_dword v{vT}, v{vZ}, {WS}, s97 offen')
    a.e('s_mov_b64 exec, -1')
TSB=244*MB
assert WS_END<=TSB
def cvt_pack(a,dst,src,n):
    for i in range(n//2):
        a.e(f'v_cvt_pk_bf16_f32 v{dst+i}, v{src+2*i}, v{src+2*i+1}')
GC0=-2*0.7978845608028654*1.4426950408889634
GC1=GC0*0.044715
def gelu(a,x,n,t,sC0,sC1):
    for i in range(n): a.e(f'v_mul_f32 v{t+i}, v{x+i}, v{x+i}')
    for i in range(n): a.e(f'v_fma_f32 v{t+i}, v{t+i}, {sC1}, {sC0}')
    for i in range(n): a.e(f'v_mul_f32 v{t+i}, v{t+i}, v{x+i}')
    for i in range(n): a.e(f'v_exp_f32 v{t+i}, v{t+i}')
    for i in range(n): a.e(f'v_add_f32 v{t+i}, 1.0, v{t+i}')
    for i in range(n): a.e(f'v_rcp_f32 v{t+i}, v{t+i}')
    for i in range(n): a.e(f'v_mul_f32 v{x+i}, v{x+i}, v{t+i}')
def tile_stats(a,x,s0,t0):
    a.e(f'v_add_f32 v{s0}, v{x}, v{x+1}\nv_mul_f32 v{s0+1}, v{x}, v{x}\nv_fmac_f32 v{s0+1}, v{x+1}, v{x+1}')
    for i in range(2,16):
        a.e(f'v_add_f32 v{s0}, v{s0}, v{x+i}\nv_fmac_f32 v{s0+1}, v{x+i}, v{x+i}')
    a.e(f'v_mov_b32 v{t0}, v{s0}\nv_mov_b32 v{t0+1}, v{s0+1}')
    a.e(f'v_permlane32_swap_b32 v{s0}, v{t0}\nv_permlane32_swap_b32 v{s0+1}, v{t0+1}')
    a.e(f'v_add_f32 v{s0}, v{s0}, v{t0}\nv_add_f32 v{s0+1}, v{s0+1}, v{t0+1}')

def lsel(a,dst,arr,add=0):
    a.e(f's_mul_i32 {dst}, {sLayer}, {hex(arr[1]-arr[0])}\ns_add_u32 {dst}, {dst}, {hex(arr[0]+add)}')
```

```python
from common import *
def gen_ks(a,kind):
    wo = kind=='wo'
    NT,NK = (2,32) if wo else (3,27)
    KSW = 256 if wo else 108
    nfr=NT*NK
    va=VA(1,256-4*max(0,nfr-64))
    def wreg(t,k):
        f=t*NK+k
        return R(256+4*f,4) if f<64 else R(256-4*(nfr-64)+4*(f-64),4)
    vL16=va.get(); vZ=va.get(); vFA=va.get(); vFB=va.get(); vF=va.get(); vF2=va.get(); vLD=va.get(); vTok8=va.get(); vOut=va.get(); T=va.get(4,2)
    acc=[va.get(16,4) for _ in range(NT)]
    A=va.get(4*NK,4)
    res=va.get(16,4)
    err=11 if wo else 12
    a.e(f'v_lshlrev_b32 v{vL16}, 4, v0\nv_mov_b32 v{vZ}, 0')
    a.e(f's_mov_b32 s24, s4\ns_mov_b32 s25, s5\ns_mov_b32 s26, s6\ns_mov_b32 s27, 0x20000')
    if wo:
        a.e('s_lshr_b32 s43, s42, 1\ns_lshl_b32 s43, s43, 1\ns_and_b32 s44, s42, 1')
        a.e(f's_lshl_b32 s45, s44, 2\ns_add_u32 s45, s45, {sWave}\ns_lshl_b32 s45, s45, 5')
    else:
        a.e(f's_mul_i32 s43, s42, 3\ns_mul_i32 s45, {sWave}, 27')
    for t in range(NT):
        a.e(f's_add_u32 s46, s43, {t}\ns_min_u32 s46, s46, 19\ns_mul_i32 s46, s46, {KSW}\ns_add_u32 s46, s46, s45\ns_lshl_b32 s46, s46, 10\ns_add_u32 s46, s46, {WN["o" if wo else "w4"][0]}')
        for k in range(NK):
            a.e(f'buffer_load_dwordx4 {wreg(t,k)}, v{vL16}, {WS}, s46 offen offset:{(k%4)*1024}')
            if k%4==3: a.e('s_add_u32 s46, s46, 4096')
    lsel(a,'s32',O if wo else G); a.e('s_lshl_b32 s46, s45, 10\ns_add_u32 s32, s32, s46')
    IB=OB if wo else GB
    if wo:
        lsel(a,'s46',[FLAG(0,ST_ATT),FLAG(1,ST_ATT)]); a.e('s_lshr_b32 s47, s45, 1\ns_add_u32 s46, s46, s47')
        a.e(f'v_and_b32 v{vFA}, 3, v0')
    else:
        lsel(a,'s46',[FLAG(0,ST_G),FLAG(1,ST_G)]); a.e(f'v_min_u32 v{vFA}, 26, v0')
    a.e(f'v_lshlrev_b32 v{vFA}, 2, v{vFA}\nv_add_u32 v{vFA}, s46, v{vFA}')
    if wo: a.e(f's_xor_b32 s48, s44, {sWave}\ns_xor_b32 s48, s48, 1\ns_and_b32 s48, s48, 1')
    else:  a.e(f's_mov_b32 s48, {sWave}')
    a.e('s_add_u32 s49, s43, s48')
    if not wo: a.e('s_cmp_lt_u32 s49, 20\ns_cselect_b32 s26, s6, 0\ns_cselect_b32 s10, s10, 0\ns_min_u32 s49, s49, 19')
    a.e('s_lshl_b32 s50, s49, 11')
    if wo:
        lsel(a,'s33',XIN); a.e('s_add_u32 s33, s33, s50')
        lsel(a,'s36',X1)
        lsel(a,'s34',PX); a.e('s_lshl_b32 s46, s49, 12\ns_add_u32 s34, s34, s46')
        lsel(a,'s46',[FLAG(0,ST_PX),FLAG(1,ST_PX)]); lsel(a,'s47',[FLAG(0,ST_X1),FLAG(1,ST_X1)])
        a.e(f's_lshl_b32 s51, s49, 2\ns_add_u32 s46, s46, s51\ns_add_u32 s47, s47, s51\nv_mov_b32 v{vFB}, s46\ns_cmp_eq_u32 {sWave}, 0\ns_cselect_b32 s37, s46, s47')
    else:
        lsel(a,'s33',X1); a.e('s_add_u32 s33, s33, s50')
        lsel(a,'s34',X1P); a.e('s_add_u32 s34, s34, s50')
        a.e(f's_mov_b32 s36, {XIN[1]}')
        a.e(f's_lshl_b32 s51, s49, 2\ns_add_u32 s37, s51, {FLAG(1,ST_X)}')
        a.e(f's_cmp_eq_u32 {sLayer}, 0\ns_cselect_b32 s26, s26, 0')
        a.e('s_lshl_b32 s52, s49, 6')
        a.e(f'v_and_b32 v{vOut}, 31, v0\nv_mul_u32_u24 v{vOut}, 1280, v{vOut}\nv_lshrrev_b32 v{T}, 5, v0\nv_lshl_add_u32 v{vOut}, v{T}, 3, v{vOut}')
    a.e(f's_lshl_b32 s51, s49, 8\ns_add_u32 s53, s36, s51\ns_add_u32 s53, s53, {STAT}\ns_add_u32 s36, s36, s50')
    a.e(f'v_and_b32 v{vTok8}, 31, v0\nv_lshlrev_b32 v{vTok8}, 3, v{vTok8}')
    LBUF=NT*4*4096
    def loadA(k):
        if k%4==0: a.e(f's_add_u32 s46, s32, {k*1024}')
        a.e(f'buffer_load_dwordx4 {vr(A+4*k,4)}, v{vL16}, {WS}, s46 offen offset:{(k%4)*1024} sc1')
    a.e(f's_mov_b32 {sItem}, 0\ns_mov_b32 {sPend}, 0\ns_mov_b32 s35, 0\ns_mov_b32 {sNeed}, 1')
    poll_block(a,vFA,sNeed,vF,err)
    for k in range(NK): loadA(k)
    a.e(f's_add_u32 s32, s32, {IB}')
    top=a.newlabel('ks_top'); a.label(top); a.reset_track()
    stamp(a,T,vZ,0)
    nov=a.newlabel('ks_n'); join=a.newlabel('ks_j')
    a.e(f's_add_u32 {sNeed}, {sItem}, 2\ns_mov_b32 {sPref}, 0')
    flag_check(a,vF,sNeed)
    a.e(f's_cbranch_scc0 {nov}')
    for Pv in (1,0):
        if Pv: a.e(f's_mov_b32 {sPref}, 1')
        else: a.label(nov)
        extra = 1 if OPT['ts'] else 0
        for k in range(NK):
            a.e(f's_waitcnt vmcnt({(NK-1 if Pv else NK-1-k)+extra if k<NK-1 or Pv else 0})')
            for t in range(NT):
                a.e(f'v_mfma_f32_32x32x16_bf16 {vr(acc[t],16)}, {wreg(t,k)}, {vr(A+4*k,4)}, {"0" if k==0 else vr(acc[t],16)}')
            if Pv: loadA(k)
            if k==NK//2:
                np_=a.newlabel('ks_np')
                a.e(f's_cmp_eq_u32 {sPend}, 0'); a.e(f's_cbranch_scc1 {np_}')
                a.e(f's_waitcnt vmcnt({k+1 if Pv else 0})')
                publish(a,T,vZ,'s37',sItem)
                a.e(f's_mov_b32 {sPend}, 0')
                a.label(np_)
        if Pv:
            a.e(f's_add_u32 s32, s32, {IB}'); a.e(f's_branch {join}')
    a.label(join); a.reset_track()
    stamp(a,T,vZ,1)
    a.e(f'buffer_load_dword v{vF}, v{vFA}, {WS}, 0 offen sc1')
    a.e(f's_lshl_b32 s46, {sWave}, 12\ns_add_u32 s46, s46, s35\nv_add_u32 v{vLD}, s46, v{vL16}')
    for t in range(NT):
        for i in range(4): a.e(f'ds_write_b128 v{vLD}, {vr(acc[t]+4*i,4)} offset:{t*16384+i*1024}')
    nfin=a.newlabel('ks_nf')
    isfin=f's_cmp_ge_u32 {sWave}, {2 if wo else 3}'
    a.wait_lg()
    a.e('s_barrier')
    a.e(isfin); a.e(f's_cbranch_scc1 {nfin}')
    x=acc[0]; y=acc[1]
    a.e(f's_lshl_b32 s46, s48, 14\ns_add_u32 s46, s46, s35\nv_add_u32 v{vLD}, s46, v{vL16}')
    for i in range(4): a.e(f'ds_read_b128 {vr(x+4*i,4)}, v{vLD} offset:{i*1024}')
    for sw in range(1,4):
        d = y if sw%2 else res
        for i in range(4): a.e(f'ds_read_b128 {vr(d+4*i,4)}, v{vLD} offset:{sw*4096+i*1024}')
        a.wait_lg()
        for i in range(0,16,2): a.e(f'v_pk_add_f32 {vr(x+i,2)}, {vr(x+i,2)}, {vr(d+i,2)}')
    def addbf(src):
        for i in range(8):
            a.e(f'v_lshlrev_b32 v{y+2*i}, 16, v{src+i}\nv_and_b32 v{y+2*i+1}, 0xffff0000, v{src+i}')
        for i in range(0,16,2): a.e(f'v_pk_add_f32 {vr(x+i,2)}, {vr(x+i,2)}, {vr(y+i,2)}')
    done=a.newlabel('ks_dn')
    if wo:
        fz=a.newlabel('ks_fz')
        a.e(f's_cmp_eq_u32 {sWave}, 1'); a.e(f's_cbranch_scc1 {fz}')
        for i in range(4): a.e(f'buffer_store_dwordx4 {vr(x+4*i,4)}, v{vL16}, {WST}, s34 offen offset:{i*1024} sc1')
        a.e('s_waitcnt vmcnt(0)')
        a.e(f's_add_u32 s46, {sItem}, 1')
        publish(a,T,vZ,'s37','s46')
        a.e(f's_branch {nfin}')
        a.label(fz)
        for i in range(2): a.e(f'buffer_load_dwordx4 {vr(res+4*i,4)}, v{vL16}, {WS}, s33 offen offset:{i*1024} sc1')
        a.e(f's_add_u32 s46, {sItem}, 1')
        poll_block(a,vFB,'s46',vF2,13,sleep=0)
        addbf(res)
        for i in range(4): a.e(f'buffer_load_dwordx4 {vr(y+4*i,4)}, v{vL16}, {WS}, s34 offen offset:{i*1024} sc1')
        a.wait_vm()
        for i in range(0,16,2): a.e(f'v_pk_add_f32 {vr(x+i,2)}, {vr(x+i,2)}, {vr(y+i,2)}')
    else:
        for i in range(2): a.e(f'buffer_load_dwordx4 {vr(res+4*i,4)}, v{vL16}, {WS}, s33 offen offset:{i*1024} sc1')
        for i in range(2): a.e(f'buffer_load_dwordx4 {vr(res+8+4*i,4)}, v{vL16}, {WS}, s34 offen offset:{i*1024} sc1')
        a.wait_vm()
        addbf(res); addbf(res+8)
    cvt_pack(a,y,x,16)
    if not wo:
        l0=a.newlabel('ks_l0')
        a.e(f's_cmp_eq_u32 {sLayer}, 0'); a.e(f's_cbranch_scc1 {l0}')
        a.e(f's_mul_i32 s46, {sItem}, {32*1280}\ns_add_u32 s46, s46, s52')
        for i in range(4): a.e(f'buffer_store_dwordx2 {vr(y+2*i,2)}, v{vOut}, {OUT}, s46 offen offset:{i*16}')
        a.e(f's_branch {nfin}')
        a.label(l0)
    for i in range(2): a.e(f'buffer_store_dwordx4 {vr(y+4*i,4)}, v{vL16}, {WST}, s36 offen offset:{i*1024} sc1')
    tile_stats(a,x,res,res+2)
    a.e(f'buffer_store_dwordx2 {vr(res,2)}, v{vTok8}, {WST}, s53 offen sc1')
    a.e(f's_mov_b32 {sPend}, 1')
    a.label(nfin); a.reset_track()
    a.e(f's_add_u32 s33, s33, {SEGB}\ns_add_u32 s34, s34, {PXB if wo else SEGB}\ns_add_u32 s36, s36, {SEGB}\ns_add_u32 s53, s53, {SEGB}')
    a.e(f's_add_u32 {sItem}, {sItem}, 1\ns_xor_b32 s35, s35, {LBUF}')
    np2=a.newlabel('ks_np2')
    a.e(f's_cmp_eq_u32 {sPref}, 0'); a.e(f's_cbranch_scc1 {np2}')
    a.e('s_waitcnt vmcnt(4)')
    a.e(f's_cmp_lg_u32 {sPend}, 0'); a.e(f's_cbranch_scc1 {top}')
    a.e('s_waitcnt vmcnt(0)')
    a.e(f's_branch {top}')
    a.label(np2)
    a.e('s_waitcnt vmcnt(0)')
    np3=a.newlabel('ks_np3')
    a.e(f's_cmp_eq_u32 {sPend}, 0'); a.e(f's_cbranch_scc1 {np3}')
    publish(a,T,vZ,'s37',sItem)
    a.e(f's_mov_b32 {sPend}, 0')
    a.label(np3)
    a.e(f's_cmp_ge_u32 {sItem}, 64'); a.e('s_cbranch_scc1 L_end')
    poll_block(a,vFA,sNeed,vF,err)
    for k in range(NK): loadA(k)
    a.e(f's_add_u32 s32, s32, {IB}')
    a.e(f's_branch {top}')
    a.reset_track()
```

```python
KB=1024; MB=1024*1024
NSEG=64
ST_X,ST_QKV,ST_CH,ST_ATT,ST_PX,ST_X1,ST_H,ST_X1P,ST_G = range(9)
def FLAG(layer,stage): return (layer*16+stage)*1024
CLAIM = 32*KB
TS    = 64*KB
RING  = 1*MB
def PM(c): return RING+c*MB
def PL(c): return RING+c*MB+512*KB
def MEMR(c): return RING+c*MB+640*KB
o=3*MB
WN={}
for name,K,N in (('q',640,4096),('k',640,4096),('v',640,4096),('o',4096,640),('w1',640,640),('w2',640,640),('w3',640,1728),('w4',1728,640)):
    WN[name]=(o,K,N); o+=K*N*2
o=(o+MB-1)//MB*MB
CF=o; o+=32*640*KB
SEGB=48*KB
STAT=40*KB
def alloc(n):
    global o
    r=o; o+=n; return r
XIN=[alloc(NSEG*SEGB) for _ in range(2)]
X1=[alloc(NSEG*SEGB) for _ in range(2)]
HS=[alloc((NSEG+2)*SEGB)+SEGB for _ in range(2)]
X1P=[alloc(NSEG*SEGB) for _ in range(2)]
GB=108*KB
G=[alloc(NSEG*GB) for _ in range(2)]
OB=256*KB
O=[alloc(NSEG*OB) for _ in range(2)]
QKVB=3*256*KB
QKV=[alloc(NSEG*QKVB) for _ in range(2)]
KVMB=32*4*KB
KVM=[alloc(NSEG*KVMB) for _ in range(2)]
PXB=80*KB
PX=[alloc(NSEG*PXB) for _ in range(2)]
WS_END=o
assert WS_END<=256*MB, WS_END
if __name__=='__main__': print(WS_END/MB)
```

```python
from common import *
LB=49152
LSCR=2*LB
def wreg(t,ks):
    f=t*40+ks
    return R(256+4*f,4) if f<64 else R(192+4*(f-64),4)

def gen_ns(a,kind):
    va=VA(1,192)
    vL16=va.get(); vZ=va.get(); vFA=va.get(); vF=va.get(); vT=va.get(); vRd=va.get(); vSt=va.get(); vC0=va.get()
    vTok8=va.get(); vO=[va.get(),va.get()]; vMu=va.get(2); vS=va.get(2); vS2=va.get(2)
    acc=[va.get(16,4),va.get(16,4)]
    cs=[va.get(16,4),va.get(16,4)]
    ar=va.get(16,4)
    tmp=va.get(32,4)
    res=va.get(16,4)
    pk=va.get(16,4)
    P={'qk':dict(w='q',nv=192,inp=XIN,fin=ST_X,nf=20,fout=ST_QKV,out=QKV,ob=QKVB),
       'v': dict(w='q',nv=192,inp=XIN,fin=ST_X,nf=20,fout=ST_QKV,out=QKV,ob=QKVB),
       'w1':dict(w='w1',nv=10,inp=X1,fin=ST_X1,nf=20,fout=ST_H,out=HS,ob=SEGB),
       'w2':dict(w='w2',nv=10,inp=HS,fin=ST_H,nf=10,fout=ST_X1P,out=X1P,ob=SEGB),
       'w3':dict(w='w3',nv=27,inp=X1P,fin=ST_X1P,nf=10,fout=ST_G,out=G,ob=GB)}[kind]
    err={'qk':1,'v':2,'w1':3,'w2':4,'w3':5}[kind]
    T = kind!='v'
    def sel(dst,arr,add=0):
        lsel(a,dst,arr,add)
    a.e(f's_mov_b32 s24, s4\ns_mov_b32 s25, s5\ns_mov_b32 s27, 0x20000')
    a.e(f's_cmp_lt_u32 s41, {P["nv"]}\ns_cselect_b32 s26, s6, 0\ns_min_u32 s41, s41, {P["nv"]-1}')
    a.e(f'v_lshlrev_b32 v{vL16}, 4, v0\nv_mov_b32 v{vZ}, 0')
    a.e(f's_mul_i32 s42, s41, {80*KB}\ns_add_u32 s42, s42, {WN[P["w"]][0]}')
    for f in range(80):
        a.e(f'buffer_load_dwordx4 {wreg(f//40,f%40)}, v{vL16}, {WS}, s42 offen offset:{(f%4)*1024}')
        if f%4==3: a.e('s_add_u32 s42, s42, 4096')
    a.e(f'v_min_u32 v{vFA}, {P["nf"]-1}, v0\nv_lshlrev_b32 v{vFA}, 2, v{vFA}')
    sel('s42',[FLAG(0,P['fin']),FLAG(1,P['fin'])]); a.e(f'v_add_u32 v{vFA}, s42, v{vFA}')
    sel('s37',[FLAG(0,P['fout']),FLAG(1,P['fout'])]); a.e('s_lshl_b32 s42, s41, 2\ns_add_u32 s37, s37, s42')
    sel('s32',P['inp']); a.e(f's_mul_i32 s43, {sWave}, {12*KB}\ns_add_u32 s32, s32, s43')
    a.e('s_add_u32 s33, s32, 4096\ns_add_u32 s34, s32, 8192')
    if kind=='w2':
        sel('s42',X1,STAT)
        a.e(f's_add_u32 s44, s42, 4096\ns_cmp_eq_u32 {sWave}, 3\ns_cselect_b32 s33, s42, s33\ns_cselect_b32 s34, s44, s34')
        sel('s45',X1); a.e('s_lshl_b32 s42, s41, 12\ns_add_u32 s45, s45, s42')
    sel('s36',P['out'], -SEGB if kind=='w1' else 0); a.e('s_lshl_b32 s42, s41, 12\ns_add_u32 s36, s36, s42')
    a.e(f'v_and_b32 v{vTok8}, 31, v0\nv_lshrrev_b32 v{vT}, 5, v0')
    a.e(f'v_mul_u32_u24 v{vSt}, 2560, v{vT}\nv_lshl_add_u32 v{vSt}, v{vTok8}, 3, v{vSt}')
    if kind=='w1':
        for t in range(2):
            a.e(f's_lshl_b32 s42, s41, 1\ns_add_u32 s42, s42, {t}')
            a.e('s_mov_b32 s44, 1\ns_cmp_ge_u32 s42, 5\ns_cselect_b32 s44, -1, s44\ns_cmp_ge_u32 s42, 10\ns_cselect_b32 s44, 2, s44\ns_cmp_ge_u32 s42, 15\ns_cselect_b32 s44, -2, s44')
            a.e(f's_add_u32 s46, s44, 32')
            a.e(f'v_add_u32 v{tmp}, s46, v{vTok8}')
            a.e(f'v_lshrrev_b32 v{tmp+1}, 5, v{tmp}\nv_and_b32 v{tmp+2}, 31, v{tmp}')
            a.e(f'v_mul_u32_u24 v{tmp+1}, {SEGB}, v{tmp+1}\nv_lshl_add_u32 v{tmp+1}, v{tmp+2}, 4, v{tmp+1}\nv_lshl_add_u32 v{vO[t]}, v{vT}, 9, v{tmp+1}')
            a.e(f'v_subrev_u32 v{tmp}, s44, v{vTok8}')
            a.e(f'v_cmp_lt_u32 vcc, 31, v{tmp}')
            a.e(f's_cmp_gt_i32 s44, 0\ns_cselect_b32 s46, 1, 64\ns_mul_i32 s46, s46, {SEGB}\ns_add_u32 s46, s46, s36')
            for i in range(4): a.e(f'v_mov_b32 v{tmp+4+i}, 0')
            a.e('s_mov_b64 exec, vcc')
            a.e(f'buffer_store_dwordx4 v[{tmp+4}:{tmp+7}], v{vL16}, {WST}, s46 offen offset:{t*2048} sc1')
            a.e(f'buffer_store_dwordx4 v[{tmp+4}:{tmp+7}], v{vL16}, {WST}, s46 offen offset:{t*2048+1024} sc1')
            a.e('s_mov_b64 exec, -1')
    a.e(f'v_lshlrev_b32 v{vTok8}, 3, v{vTok8}')
    a.e(f'v_mov_b32 v{vC0}, {hex(f2u(GC0))}\ns_mov_b32 s47, {hex(f2u(GC1))}')
    a.e(f's_mov_b32 s48, {hex(f2u(1/640.))}\ns_mov_b32 s49, {hex(f2u(1e-5))}')
    a.wait_vm()
    if kind!='w2':
        for i in range(4): a.e(f'v_mov_b32 v{ar+i}, 0x3f803f80')
        for t in range(2):
            for ks in range(40):
                c='0' if ks==0 else vr(cs[t],16)
                A,Bq=(wreg(t,ks),vr(ar,4)) if T else (vr(ar,4),wreg(t,ks))
                a.e(f'v_mfma_f32_32x32x16_bf16 {vr(cs[t],16)}, {A}, {Bq}, {c}')
    def dma():
        for g in range(3):
            a.e(f's_add_u32 s46, s44, {g*4096}\ns_mov_b32 m0, s46')
            for i in range(4):
                a.e(f'buffer_load_dwordx4 v{vL16}, {WS}, s{32+g} offen offset:{i*1024} sc1 lds',tag='dma')
            a.e(f's_add_u32 s{32+g}, s{32+g}, {SEGB}')
    def set_need(nxt):
        la = 2 if kind=='w2' else 1
        a.e(f's_add_u32 {sNeed}, {sItem}, {nxt+la}')
        if kind=='w2': a.e(f's_min_u32 {sNeed}, {sNeed}, 64')
    a.e(f's_mov_b32 {sItem}, 0\ns_mov_b32 {sPend}, 0\ns_mov_b32 s35, 0')
    set_need(0)
    poll_block(a,vFA,sNeed,vF,err)
    a.e('s_mov_b32 s44, s43'); dma(); a.wait_vm()
    top=a.newlabel('ns_top')
    nst={'qk':4,'v':4,'w1':4,'w2':6,'w3':4}[kind]
    a.label(top)
    a.e(f's_waitcnt vmcnt({nst})')
    a.e('s_barrier')
    stamp(a,vT,vZ,0)
    set_need(1)
    a.e(f's_mov_b32 {sPref}, 0')
    a.e(f'buffer_load_dword v{vF}, v{vFA}, {WS}, 0 offen sc1')
    if kind=='w2':
        for i in range(4): a.e(f'buffer_load_dwordx4 {vr(res+4*i,4)}, v{vL16}, {WS}, s45 offen offset:{i*1024} sc1')
        a.e(f's_add_u32 s45, s45, {SEGB}')
    a.e(f'v_add_u32 v{vRd}, s35, v{vL16}\nv_add_u32 v{vT}, s35, v{vSt}')
    a.lg=[]
    for i in range(5):
        a.e(f'ds_read2_b64 {vr(tmp+4*i,4)}, v{vT} offset0:{0} offset1:{32}'.replace('offset0:0','offset0:0') if False else
            f'ds_read_b64 {vr(tmp+4*i,2)}, v{vT} offset:{STAT+(2*i)*256}\nds_read_b64 {vr(tmp+4*i+2,2)}, v{vT} offset:{STAT+(2*i+1)*256}',tag='st')
    def rd(ks): a.e(f'ds_read_b128 {vr(ar+4*(ks%4),4)}, v{vRd} offset:{ks*1024}',tag=('a',ks))
    for ks in range(3): rd(ks)
    def stats_calc():
        a.e(f'v_add_f32 v{vS}, v{tmp}, v{tmp+2}\nv_add_f32 v{vS+1}, v{tmp+1}, v{tmp+3}')
        for i in range(2,10): a.e(f'v_add_f32 v{vS}, v{vS}, v{tmp+2*i}\nv_add_f32 v{vS+1}, v{vS+1}, v{tmp+2*i+1}')
        a.e(f'v_mov_b32 v{vS2}, v{vS}\nv_mov_b32 v{vS2+1}, v{vS+1}')
        a.e(f'v_permlane32_swap_b32 v{vS}, v{vS2}\nv_permlane32_swap_b32 v{vS+1}, v{vS2+1}')
        a.e(f'v_add_f32 v{vS}, v{vS}, v{vS2}\nv_add_f32 v{vS+1}, v{vS+1}, v{vS2+1}')
        a.e(f'v_mul_f32 v{vS}, s48, v{vS}\nv_mul_f32 v{vS+1}, s48, v{vS+1}')
        a.e(f'v_fma_f32 v{vS+1}, -v{vS}, v{vS}, v{vS+1}\nv_max_f32 v{vS+1}, 0, v{vS+1}')
        a.e(f'v_add_f32 v{vS2}, s49, v{vS+1}\nv_rsq_f32 v{vMu}, v{vS2}')
        if kind=='w1':
            a.e(f'v_mul_f32 v{vS2}, v{vMu}, v{vMu}\nv_mul_f32 v{vS2}, v{vS2}, v{vS+1}\nv_add_f32 v{vS2}, s49, v{vS2}\nv_rsq_f32 v{vS2}, v{vS2}\nv_mul_f32 v{vMu}, v{vMu}, v{vS2}')
        a.e(f'v_mul_f32 v{vMu+1}, v{vS}, v{vMu}')
        if kind=='v':
            a.e(f's_lshl_b32 s42, {sWave}, 8\ns_add_u32 s42, s42, {LSCR}')
            a.e(f'v_add_u32 v{vS}, s42, v{vTok8}')
            a.e(f'ds_write_b64 v{vS}, {vr(vMu,2)}',tag='sw')
            a.e(f'v_lshrrev_b32 v{vS+1}, 5, v0\nv_lshlrev_b32 v{vS+1}, 5, v{vS+1}\nv_add_u32 v{vS+1}, s42, v{vS+1}')
            for g in range(4):
                a.e(f'ds_read_b128 {vr(tmp+8*g,4)}, v{vS+1} offset:{g*64}\nds_read_b128 {vr(tmp+8*g+4,4)}, v{vS+1} offset:{g*64+16}',tag='sr')
    def checkpoint(first):
        skip=a.newlabel('ns_ck'); nr=a.newlabel('ns_nr')
        if not first:
            a.e(f's_cmp_lg_u32 {sPref}, 0'); a.e(f's_cbranch_scc1 {skip}')
        a.e('s_waitcnt vmcnt(0)')
        if first:
            np_=a.newlabel('ns_np')
            a.e(f's_cmp_eq_u32 {sPend}, 0'); a.e(f's_cbranch_scc1 {np_}')
            publish(a,vT,vZ,'s37',sItem)
            a.e(f's_mov_b32 {sPend}, 0')
            a.label(np_)
        a.e(f's_cmp_ge_u32 {sItem}, 63'); a.e(f's_cbranch_scc1 {skip}')
        flag_check(a,vF,sNeed)
        a.e(f's_cbranch_scc0 {nr}')
        a.e(f's_xor_b32 s44, s35, {LB}\ns_add_u32 s44, s44, s43')
        dma()
        a.e(f's_mov_b32 {sPref}, 1')
        a.e(f's_branch {skip}')
        a.label(nr)
        a.e(f'buffer_load_dword v{vF}, v{vFA}, {WS}, 0 offen sc1')
        a.label(skip)
    CK=(10,20,30)
    for ks in range(40):
        if ks+3<40: rd(ks+3)
        a.wait_lg(('a',ks))
        for t in range(2):
            c='0' if ks==0 else vr(acc[t],16)
            A,Bq=(wreg(t,ks),vr(ar+4*(ks%4),4)) if T else (vr(ar+4*(ks%4),4),wreg(t,ks))
            a.e(f'v_mfma_f32_32x32x16_bf16 {vr(acc[t],16)}, {A}, {Bq}, {c}')
        if ks==1: stats_calc()
        if ks+1 in CK: checkpoint(ks+1==CK[0])
    a.wait_lg()
    stamp(a,vT,vZ,1)
    for t in range(2):
        x=acc[t]
        if kind=='w2':
            for i in range(8):
                a.e(f'v_lshlrev_b32 v{tmp+2*i}, 16, v{res+8*t+i}\nv_and_b32 v{tmp+2*i+1}, 0xffff0000, v{res+8*t+i}')
            for i in range(16):
                a.e(f'v_fma_f32 v{tmp+i}, v{tmp+i}, v{vMu}, -v{vMu+1}')
            for i in range(16):
                a.e(f'v_add_f32 v{x+i}, v{x+i}, v{tmp+i}')
        elif T:
            for i in range(16): a.e(f'v_mul_f32 v{tmp+i}, v{vMu+1}, v{cs[t]+i}')
            for i in range(16): a.e(f'v_fma_f32 v{x+i}, v{x+i}, v{vMu}, -v{tmp+i}')
        else:
            for i in range(16): a.e(f'v_mul_f32 v{res+i}, v{tmp+2*i+1}, v{cs[t]}')
            for i in range(16): a.e(f'v_fma_f32 v{x+i}, v{x+i}, v{tmp+2*i}, -v{res+i}')
        if kind in('w1','w3'): gelu(a,x,16,tmp,f'v{vC0}','s47')
        cvt_pack(a,pk+8*t,x,16)
        ov = vO[t] if kind=='w1' else vL16
        a.e(f'buffer_store_dwordx4 {vr(pk+8*t,4)}, v{ov}, {WST}, s36 offen offset:{t*2048} sc1')
        a.e(f'buffer_store_dwordx4 {vr(pk+8*t+4,4)}, v{ov}, {WST}, s36 offen offset:{t*2048+1024} sc1')
        if kind=='w2':
            tile_stats(a,x,tmp+16+2*t,tmp+20)
            a.e(f's_mul_i32 s42, s41, {4096-512}\ns_sub_u32 s42, s36, s42\ns_add_u32 s42, s42, {STAT+t*256}')
            a.e(f'buffer_store_dwordx2 {vr(tmp+16+2*t,2)}, v{vTok8}, {WST}, s42 offen sc1')
    a.e(f's_add_u32 s36, s36, {P["ob"]}')
    a.e(f's_add_u32 {sItem}, {sItem}, 1\ns_xor_b32 s35, s35, {LB}\ns_mov_b32 {sPend}, 1')
    a.e(f's_cmp_lg_u32 {sPref}, 0'); a.e(f's_cbranch_scc1 {top}')
    a.e('s_waitcnt vmcnt(0)')
    publish(a,vT,vZ,'s37',sItem)
    a.e(f's_mov_b32 {sPend}, 0')
    a.e(f's_cmp_ge_u32 {sItem}, 64'); a.e('s_cbranch_scc1 L_end')
    poll_block(a,vFA,sNeed,vF,err)
    a.e('s_add_u32 s44, s35, s43'); dma(); a.wait_vm()
    a.e(f's_branch {top}')
    a.reset_track()
```

```python
from asmb import *
from layout import *
KARG={'x':0,'mem0':8,'q':16,'k':24,'v':32,'o':40,'w1':64,'w2':72,'w3':80,'w4':88,'out':96,'dbg':104,'ws':112}
def magic(d): return (2**32+d-1)//d
def sdiv(a,q,r,x,d,tmp):
    a.e(f's_mul_hi_u32 {q}, {x}, {hex(magic(d))}')
    a.e(f's_mul_i32 {tmp}, {q}, {d}')
    a.e(f's_sub_u32 {r}, {x}, {tmp}')
def srd(a,b,ptr,nbytes):
    a.e(f's_mov_b32 s{b}, s{ptr}\ns_and_b32 s{b+1}, s{ptr+1}, 0xffff\ns_mov_b32 s{b+2}, {hex(nbytes)}\ns_mov_b32 s{b+3}, 0x20000')

def gen_pre(a,name):
    a.raw(f'.globl {name}\n.p2align 8\n.type {name},@function')
    a.label(name)
    a.e('s_load_dwordx2 s[20:21], s[0:1], 112')
    a.e('v_lshrrev_b32 v1, 6, v0\nv_and_b32 v0, 63, v0')
    a.e('v_readfirstlane_b32 s3, v1')
    a.e('s_lshl_b32 s2, s2, 2\ns_add_u32 s2, s2, s3')
    a.e('v_lshlrev_b32 v2, 4, v0')
    a.e('s_waitcnt lgkmcnt(0)')
    srd(a,4,20,256*MB)
    end=a.newlabel('pre_end')
    def gather(rows,rowbytes):
        for j,r in enumerate(rows):
            a.e(f's_add_u32 s26, s24, {r*rowbytes}')
            a.e(f'buffer_load_ushort v{8+j}, v3, s[8:11], s26 offen')
        a.e('s_waitcnt vmcnt(0)')
        for j in range(4):
            a.e(f'v_lshl_or_b32 v{16+j}, v{9+2*j}, 16, v{8+2*j}')
        a.e('buffer_store_dwordx4 v[16:19], v2, s[4:7], s25 offen')
        a.e(f's_branch {end}')
    t0=0
    for nm,(off,K,N) in WN.items():
        KS=K//16; n=(N//32)*KS
        nxt=a.newlabel('pre_n')
        a.e(f's_cmp_ge_u32 s2, {t0+n}'); a.e(f's_cbranch_scc1 {nxt}')
        a.e(f's_load_dwordx2 s[22:23], s[0:1], {KARG[nm]}')
        a.e(f's_sub_u32 s27, s2, {t0}')
        sdiv(a,'s28','s29','s27',KS,'s30')
        a.e(f's_mul_i32 s24, s29, {16*N*2}\ns_lshl_b32 s30, s28, 6\ns_add_u32 s24, s24, s30')
        a.e(f's_lshl_b32 s25, s27, 10\ns_add_u32 s25, s25, {off}')
        a.e(f'v_lshrrev_b32 v4, 5, v0\nv_and_b32 v5, 31, v0\nv_mul_u32_u24 v4, {4*N*2}, v4\nv_lshl_add_u32 v3, v5, 1, v4')
        a.e('s_waitcnt lgkmcnt(0)')
        srd(a,8,22,K*N*2)
        gather([0,1,2,3,8,9,10,11],N*2)
        a.label(nxt); t0+=n
    n=32*4*80*2
    nxt=a.newlabel('pre_n')
    a.e(f's_cmp_ge_u32 s2, {t0+n}'); a.e(f's_cbranch_scc1 {nxt}')
    a.e(f's_sub_u32 s27, s2, {t0}')
    a.e(f's_lshl_b32 s25, s27, 10\ns_add_u32 s25, s25, {CF}')
    a.e('s_and_b32 s31, s27, 1\ns_lshr_b32 s27, s27, 1')
    sdiv(a,'s28','s29','s27',80,'s30')
    a.e('v_and_b32 v5, 15, v0\nv_lshrrev_b32 v4, 4, v0')
    a.e('v_lshrrev_b32 v6, 1, v4\nv_and_b32 v7, 1, v4')
    lz=a.newlabel('pre_z')
    a.e('s_cmp_ge_u32 s29, 60'); a.e(f's_cbranch_scc1 {lz}')
    sdiv(a,'s32','s33','s29',20,'s30')
    sdiv(a,'s34','s35','s33',10,'s30')
    a.e('s_load_dwordx2 s[22:23], s[0:1], 16\ns_load_dwordx2 s[36:37], s[0:1], 24\ns_load_dwordx2 s[38:39], s[0:1], 32')
    a.e('s_waitcnt lgkmcnt(0)')
    a.e('s_cmp_eq_u32 s32, 1\ns_cselect_b32 s22, s36, s22\ns_cselect_b32 s23, s37, s23')
    a.e('s_cmp_eq_u32 s32, 2\ns_cselect_b32 s22, s38, s22\ns_cselect_b32 s23, s39, s23')
    srd(a,8,22,640*4096*2)
    a.e('s_lshl_b32 s24, s35, 1\ns_add_u32 s24, s24, s31\ns_lshl_b32 s24, s24, 18')
    a.e('s_lshl_b32 s30, s28, 6\ns_add_u32 s24, s24, s30')
    a.e('s_cmp_eq_u32 s32, 2\ns_cselect_b32 s30, 5, 1\ns_cselect_b32 s40, 1, 2')
    a.e('s_lshl_b32 s30, s34, s30\ns_add_u32 s24, s24, s30')
    a.e('v_lshlrev_b32 v3, s40, v5')
    a.e('v_lshl_add_u32 v3, v6, 17, v3\nv_lshl_add_u32 v3, v7, 15, v3')
    gather([0,1,8,9,2,3,10,11],8192)
    a.label(lz)
    a.e('s_load_dwordx2 s[22:23], s[0:1], 40')
    a.e('s_sub_u32 s29, s29, 60\ns_lshr_b32 s32, s29, 1\ns_and_b32 s33, s29, 1')
    a.e('s_lshr_b32 s34, s28, 2\ns_and_b32 s35, s28, 3')
    a.e('s_lshl_b32 s24, s34, 2\ns_lshl_b32 s30, s33, 1\ns_add_u32 s24, s24, s30\ns_add_u32 s24, s24, s31\ns_mul_i32 s24, s24, %d'%(32*1280))
    a.e('s_lshl_b32 s36, s35, 7\ns_add_u32 s36, s36, s32')
    a.e('s_lshl_b32 s37, s35, 5\ns_add_u32 s37, s37, s32\ns_add_u32 s37, s37, 504')
    a.e('s_cmp_lt_u32 s32, 8\ns_cselect_b32 s36, s36, s37\ns_cselect_b32 s40, 4, 2')
    a.e('s_lshl_b32 s36, s36, 1\ns_add_u32 s24, s24, s36')
    a.e('v_lshlrev_b32 v3, s40, v5')
    a.e(f'v_mul_u32_u24 v7, {16*1280}, v7\nv_mul_u32_u24 v6, {8*1280}, v6\nv_add3_u32 v3, v3, v6, v7')
    a.e('s_waitcnt lgkmcnt(0)')
    srd(a,8,22,4096*640*2)
    gather([0,1,4,5,2,3,6,7],1280)
    a.label(nxt); t0+=n
    n=64*20
    nxt=a.newlabel('pre_n')
    a.e(f's_cmp_ge_u32 s2, {t0+n}'); a.e(f's_cbranch_scc1 {nxt}')
    a.e('s_load_dwordx2 s[22:23], s[0:1], 0')
    a.e(f's_sub_u32 s27, s2, {t0}')
    sdiv(a,'s28','s29','s27',20,'s30')
    a.e(f's_mul_i32 s24, s28, {32*1280}\ns_lshl_b32 s30, s29, 6\ns_add_u32 s24, s24, s30')
    a.e('v_lshrrev_b32 v4, 5, v0\nv_and_b32 v5, 31, v0\nv_mul_u32_u24 v3, 1280, v5\nv_lshl_add_u32 v3, v4, 3, v3')
    a.e('s_waitcnt lgkmcnt(0)')
    srd(a,8,22,2048*640*2)
    for i in range(4):
        a.e(f'buffer_load_dwordx2 v[{8+2*i}:{9+2*i}], v3, s[8:11], s24 offen offset:{16*i}')
    a.e(f's_mul_i32 s25, s28, {SEGB}\ns_add_u32 s25, s25, {XIN[0]}')
    a.e('s_lshl_b32 s30, s29, 11\ns_add_u32 s26, s25, s30')
    a.e('s_waitcnt vmcnt(0)')
    a.e('buffer_store_dwordx4 v[8:11], v2, s[4:7], s26 offen\nbuffer_store_dwordx4 v[12:15], v2, s[4:7], s26 offen offset:1024')
    a.e('v_mov_b32 v20, 0\nv_mov_b32 v21, 0')
    for i in range(8):
        a.e(f'v_lshlrev_b32 v16, 16, v{8+i}\nv_and_b32 v17, 0xffff0000, v{8+i}')
        a.e('v_add_f32 v20, v20, v16\nv_fmac_f32 v21, v16, v16\nv_add_f32 v20, v20, v17\nv_fmac_f32 v21, v17, v17')
    a.e('v_mov_b32 v22, v20\nv_mov_b32 v23, v21')
    a.e('v_permlane32_swap_b32 v20, v22\nv_permlane32_swap_b32 v21, v23')
    a.e('v_add_f32 v20, v20, v22\nv_add_f32 v21, v21, v23')
    a.e('v_lshlrev_b32 v5, 3, v5')
    a.e(f's_lshl_b32 s30, s29, 8\ns_add_u32 s26, s25, s30\ns_add_u32 s26, s26, {STAT}')
    a.e('buffer_store_dwordx2 v[20:21], v5, s[4:7], s26 offen')
    a.e(f's_branch {end}')
    a.label(nxt); t0+=n
    n=64
    nxt=a.newlabel('pre_n')
    a.e(f's_cmp_ge_u32 s2, {t0+n}'); a.e(f's_cbranch_scc1 {nxt}')
    a.e(f's_sub_u32 s27, s2, {t0}')
    a.e('s_cmp_eq_u32 s27, 0\ns_cselect_b32 s28, 64, 0\ns_lshl_b32 s25, s27, 10')
    a.e('v_mov_b32 v8, s28\nv_mov_b32 v9, s28\nv_mov_b32 v10, s28\nv_mov_b32 v11, s28')
    a.e('buffer_store_dwordx4 v[8:11], v2, s[4:7], s25 offen')
    a.e(f's_branch {end}')
    a.label(nxt); t0+=n
    n=2048
    a.e(f's_cmp_ge_u32 s2, {t0+n}'); a.e(f's_cbranch_scc1 {end}')
    a.e(f's_sub_u32 s27, s2, {t0}\ns_lshl_b32 s25, s27, 10\ns_add_u32 s25, s25, {RING}')
    a.e('v_mov_b32 v8, -1\nv_mov_b32 v9, -1\nv_mov_b32 v10, -1\nv_mov_b32 v11, -1')
    a.e('buffer_store_dwordx4 v[8:11], v2, s[4:7], s25 offen')
    t0+=n
    a.label(end)
    a.e('s_endpgm')
    a.reset_track()
    return (t0+3)//4
```

```python
import sys
from common import *
from pre import gen_pre
from ns import gen_ns
NAME='interleave_layers__memory_aug_recurrent_mem_tr__mixer_s_mlp__prompt'
LDS_BYTES=160*1024
def kd(name,vgpr,acc,sgpr=102):
    return f'''.amdhsa_kernel {name}
  .amdhsa_next_free_vgpr {vgpr}
  .amdhsa_next_free_sgpr {sgpr}
  .amdhsa_accum_offset {acc}
  .amdhsa_group_segment_fixed_size 0
  .amdhsa_kernarg_size 120
  .amdhsa_user_sgpr_count 2
  .amdhsa_user_sgpr_kernarg_segment_ptr 1
  .amdhsa_system_sgpr_workgroup_id_x 1
  .amdhsa_float_denorm_mode_32 3
.end_amdhsa_kernel
'''
WSTART={'qkv':0,'wo':48,'att':68,'w1':76,'w2':79,'w3':82,'w4':89}
def gen_main(a,name,roles):
    a.raw(f'.globl {name}\n.p2align 8\n.type {name},@function')
    a.label(name)
    a.e('s_cmp_ge_u32 s2, 256'); a.e('s_cbranch_scc1 L_end')
    a.e('s_load_dwordx2 s[20:21], s[0:1], 112\ns_load_dwordx2 s[22:23], s[0:1], 96\ns_load_dwordx2 s[24:25], s[0:1], 104\ns_load_dwordx2 s[26:27], s[0:1], 8')
    a.e('v_lshrrev_b32 v1, 6, v0\nv_and_b32 v0, 63, v0')
    a.e(f'v_readfirstlane_b32 {sWave}, v1')
    a.e('s_getreg_b32 s41, hwreg(HW_REG_XCC_ID)\ns_and_b32 s41, s41, 7')
    a.e('s_waitcnt lgkmcnt(0)')
    srd(a,4,20,256*MB); srd(a,8,22,2048*640*2); srd(a,12,24,256); srd(a,16,26,8*640*2)
    a.e(f's_mov_b32 {sItem}, 0')
    cl=a.newlabel('claimed'); got=a.newlabel('got')
    a.e(f'v_mov_b32 v4, {LDS_BYTES-16}')
    a.e(f's_cmp_lg_u32 {sWave}, 0'); a.e(f's_cbranch_scc1 {cl}')
    a.e(f's_lshl_b32 s42, s41, 7\ns_add_u32 s42, s42, {CLAIM}')
    a.e('v_mov_b32 v2, 1\nv_mov_b32 v3, 0')
    a.e('s_mov_b64 exec, 1')
    a.e(f'buffer_atomic_add v2, v3, {WS}, s42 offen sc0 sc1')
    a.e('s_waitcnt vmcnt(0)')
    a.e('s_mov_b64 exec, -1')
    a.e('v_readfirstlane_b32 s43, v2')
    a.e('s_lshl_b32 s44, s41, 5\ns_add_u32 s44, s44, s43')
    a.e('s_cmp_lt_u32 s43, 32'); a.e(f's_cbranch_scc1 {got}')
    a.e('v_mov_b32 v2, 1')
    a.e('s_mov_b64 exec, 1')
    a.e(f's_mov_b32 s42, {CLAIM+8*128}')
    a.e(f'buffer_atomic_add v2, v3, {WS}, s42 offen sc0 sc1')
    a.e('s_waitcnt vmcnt(0)')
    a.e('s_mov_b64 exec, -1')
    a.e('v_readfirstlane_b32 s43, v2')
    wait_all_registered(a,2,3)
    a.e('s_mov_b32 s44, 255')
    for x in range(8):
        a.e(f's_min_u32 s45, s{50+x}, 32\ns_sub_u32 s46, 32, s45\ns_add_u32 s45, s45, s43\ns_add_u32 s45, s45, {32*x}')
        a.e('s_cmp_lt_u32 s43, s46\ns_cselect_b32 s44, s45, s44\ns_sub_u32 s43, s43, s46')
    a.label(got)
    a.e('v_mov_b32 v2, s44')
    a.e('ds_write_b32 v4, v2')
    a.e('s_waitcnt lgkmcnt(0)')
    a.label(cl)
    a.e('s_barrier')
    a.e('ds_read_b32 v2, v4')
    a.e('s_waitcnt lgkmcnt(0)')
    a.e(f'v_readfirstlane_b32 {sRole}, v2')
    a.e('s_barrier')
    a.reset_track()
    a.e(f's_cmp_lt_u32 {sRole}, 64'); a.e('s_cbranch_scc1 R_chain')
    a.e(f's_sub_u32 s42, {sRole}, 64\ns_cmp_ge_u32 s42, 96\ns_cselect_b32 {sLayer}, 1, 0\ns_cselect_b32 s43, 96, 0\ns_sub_u32 s42, s42, s43')
    if OPT.get('layers',2)==1:
        a.e(f's_cmp_eq_u32 {sLayer}, 1'); a.e('s_cbranch_scc1 L_end')
    order=[('qk',0,32),('v',32,48),('wo',48,68),('att',68,76),('w1',76,79),('w2',79,82),('w3',82,89),('w4',89,96)]
    for nm,lo,hi in order:
        a.e(f's_cmp_lt_u32 s42, {hi}'); a.e(f's_cbranch_scc1 R_{nm}')
    a.e('s_branch L_end')
    for nm,lo,hi in order:
        a.label(f'R_{nm}')
        if nm not in roles: a.e('s_branch L_end'); continue
        base = 0 if nm in('qk','v') else lo
        a.e(f's_sub_u32 s42, s42, {base}')
        if nm in('qk','v','w1','w2','w3'):
            a.e(f's_lshl_b32 s41, s42, 2\ns_add_u32 s41, s41, {sWave}')
            gen_ns(a,nm)
        elif nm=='att':
            from att import gen_att
            gen_att(a)
        else:
            from ks import gen_ks
            gen_ks(a,nm)
    a.label('R_chain')
    if 'chain' in roles:
        from chain import gen_chain
        gen_chain(a)
    else: a.e('s_branch L_end')
    a.label('L_fail')
    a.e(f's_lshl_b32 s42, {sRole}, 8\ns_or_b32 s42, s42, {sErr}\ns_lshl_b32 s43, {sItem}, 16\ns_or_b32 s42, s42, s43')
    a.e(f's_lshl_b32 s43, {sErr}, 2')
    a.e('s_mov_b64 exec, -1')
    a.e('v_mov_b32 v1, s42\nv_mov_b32 v2, 0')
    a.e(f'buffer_store_dword v1, v2, {DBG}, s43 offen')
    a.label('L_end')
    a.e('s_endpgm')
def wait_all_registered(a,vF,vA,stop_slot=None):
    L=a.newlabel('reg'); D=a.newlabel('regd')
    a.e(f'v_and_b32 v{vA}, 7, v0\nv_lshlrev_b32 v{vA}, 7, v{vA}\nv_add_u32 v{vA}, {CLAIM}, v{vA}')
    a.e(f's_mov_b32 {sCnt}, 0')
    a.label(L)
    a.e(f'buffer_load_dword v{vF}, v{vA}, {WS}, 0 offen sc1')
    a.e('s_waitcnt vmcnt(0)')
    for x in range(8): a.e(f'v_readlane_b32 s{50+x}, v{vF}, {x}')
    if stop_slot:
        a.e(f'v_readlane_b32 s58, v{vF}, {stop_slot}')
        a.e('s_cmp_ge_u32 s58, 32'); a.e(f's_cbranch_scc1 {D}')
    a.e('s_add_u32 s59, s50, s51')
    for x in range(2,8): a.e(f's_add_u32 s59, s59, s{50+x}')
    a.e('s_cmp_ge_u32 s59, 256'); a.e(f's_cbranch_scc1 {D}')
    a.e('s_sleep 2')
    a.e(f's_add_u32 {sCnt}, {sCnt}, 1\ns_cmp_lt_u32 {sCnt}, {POLL_LIMIT}'); a.e(f's_cbranch_scc1 {L}')
    a.e(f's_mov_b32 {sErr}, 15'); a.e('s_branch L_fail')
    a.label(D); a.vm=[]
import common; common.wait_all_registered=wait_all_registered
def build(roles,path):
    a=Asm()
    npre=gen_pre(a,'pre_kernel')
    gen_main(a,NAME+'_kernel',roles)
    hdr=open('cdna_kernels/'+NAME+'.s.ref').read().split('; Override')[0]
    s=hdr+f'; @launch kernel=pre_kernel grid=({npre},1,1) block=(256,1,1) lds=0\n; @launch kernel={NAME}_kernel grid=(256,1,1) block=(256,1,1) lds={LDS_BYTES}\n'
    s+='.amdgcn_target "amdgcn-amd-amdhsa--gfx950"\n.text\n'+a.text()
    s+='.section .rodata,"a"\n.p2align 6\n'+kd('pre_kernel',32,32)+'.p2align 6\n'+kd(NAME+'_kernel',512,256)
    open(path,'w').write(s)
    print('wrote',path,len(s),'bytes')
if __name__=='__main__':
    roles=sys.argv[1].split(',')
    for o in sys.argv[3:]:
        k,v=o.split('='); OPT[k]=int(v)
    build(roles,sys.argv[2])
```

```python
import re

REG_RE = re.compile(r'^(-|abs\()?([vas])(?:(\d+)|\[(\d+):(\d+)\])\)?$')
TRANS = ('v_exp_f32','v_log_f32','v_rcp_f32','v_rsq_f32','v_sqrt_f32','v_sin_f32','v_cos_f32')

def regs_of(op):
    op = op.strip()
    if op == 'vcc': return [('s','vcc')]
    if op == 'exec': return [('s','exec')]
    if op == 'm0': return [('s','m0')]
    m = REG_RE.match(op)
    if not m: return []
    k = m.group(2)
    if m.group(3) is not None: return [(k,int(m.group(3)))]
    return [(k,i) for i in range(int(m.group(4)), int(m.group(5))+1)]

def split_ops(s):
    out=[];cur='';d=0
    for ch in s:
        if ch in '[(': d+=1
        if ch in '])': d-=1
        if ch==',' and d==0: out.append(cur.strip());cur=''
        else: cur+=ch
    if cur.strip(): out.append(cur.strip())
    return out

def mfma_passes(mn):
    if '32x32' in mn: return 8
    if '16x16' in mn: return 4
    raise ValueError(mn)

class Ins:
    __slots__=('text','mn','cls','dst','src','srcC','srcAB','passes','store_data','wide','sread')
    def __init__(self,text):
        self.text=text
        t=text.split(';')[0].strip()
        parts=t.split(None,1)
        self.mn=mn=parts[0]
        rest=parts[1] if len(parts)>1 else ''
        ops=split_ops(rest)
        ops2=[]
        for o in ops:
            ops2.append(o.split()[0] if o else o)
        mods=rest
        self.dst=[];self.src=[];self.srcC=[];self.srcAB=[];self.passes=0;self.store_data=[];self.wide=False
        R=[regs_of(o) for o in ops2]
        if mn.startswith('v_mfma'):
            self.cls='mfma'; self.passes=mfma_passes(mn)
            self.dst=R[0]; self.srcAB=R[1]+R[2]; self.srcC=R[3]; self.src=self.srcAB+self.srcC
        elif mn.startswith('v_smfmac'):
            self.cls='mfma'; self.passes=mfma_passes(mn)
            self.dst=R[0]; self.srcAB=R[1]+R[2]+R[3]; self.srcC=R[0]; self.src=self.srcAB+self.srcC
        elif mn.startswith('v_'):
            self.cls='valu'
            if mn.startswith('v_permlane') and 'swap' in mn:
                self.dst=R[0]+R[1]; self.src=R[0]+R[1]
            elif mn.startswith(('v_add_co','v_sub_co','v_addc_co','v_subb_co')):
                self.dst=R[0]+R[1]; self.src=sum(R[2:],[])
            elif mn=='v_nop':
                pass
            else:
                self.dst=R[0]; self.src=sum(R[1:],[])
                if mn.startswith(('v_fmac','v_dot2c','v_writelane')) or 'dpp' in mn: self.src=self.src+R[0]
                if mn.startswith('v_cndmask') and len(ops)==3: self.src=self.src+[('s','vcc')]
        elif mn.startswith(('buffer_','global_')):
            self.cls='vmem'
            islds = (' lds' in ' '+mods) or ('_lds_' in mn)
            if mn in ('buffer_inv','buffer_wbl2'): pass
            elif 'store' in mn:
                if mn.startswith('buffer_'): self.store_data=R[0]; self.src=sum(R,[])
                else: self.store_data=R[1]; self.src=sum(R,[])
                self.wide = ('x3' in mn or 'x4' in mn)
            elif 'atomic' in mn:
                self.src=sum(R,[])
                if 'sc0' in mods: self.dst=R[0]
            elif islds:
                self.src=sum(R,[])+[('s','m0')]; self.cls='vmemlds'
            else:
                self.dst=R[0]; self.src=sum(R[1:],[])
        elif mn.startswith('ds_'):
            self.cls='ds'
            if mn.startswith(('ds_read','ds_bpermute','ds_permute','ds_swizzle')): self.dst=R[0]; self.src=sum(R[1:],[])
            else: self.src=sum(R,[])
        elif mn.startswith('s_'):
            self.cls='salu'
            if mn.startswith(('s_cmp','s_cbranch','s_branch','s_waitcnt','s_nop','s_barrier','s_sleep','s_endpgm','s_setprio','s_bitcmp')):
                self.src=sum(R,[])
            else:
                self.dst=R[0] if R else []; self.src=sum(R[1:],[])
                if 'saveexec' in mn: self.dst=self.dst+[('s','exec')]
        else:
            raise ValueError('unknown instr '+text)

def states_of(ins):
    if ins.mn=='s_nop':
        return int(ins.text.split()[1],0)+1
    return 1

def need(prod, cons):
    n=0
    pd=set(prod.dst)
    if prod.cls=='valu':
        vd={r for r in pd if r[0]!='s'}; sd={r for r in pd if r[0]=='s'}
        if vd:
            if cons.cls=='mfma' and vd&set(cons.src): n=max(n,2)
            if cons.cls=='valu' and vd&set(cons.src):
                if cons.mn.startswith(('v_readlane','v_readfirstlane')): n=max(n,1)
                if 'dpp' in cons.mn or cons.mn.startswith('v_permlane'): n=max(n,2)
                if prod.mn.startswith(TRANS) and not cons.mn.startswith(TRANS): n=max(n,1)
                if prod.mn.startswith('v_permlane'): n=max(n,1)
                if prod.mn.startswith('v_dot2') and prod.mn!=cons.mn: n=max(n,3)
            if prod.mn.startswith(TRANS) and cons.cls in('vmem','ds') and vd&set(cons.src): n=max(n,1)
        if sd:
            if cons.cls=='valu' and sd&set(cons.src):
                n=max(n,4 if cons.mn.startswith(('v_readlane','v_writelane')) else 2)
            if cons.cls in('vmem','vmemlds') and sd&set(cons.src): n=max(n,5)
            if cons.cls=='salu' and sd&set(cons.src): n=max(n,1)
    elif prod.cls=='mfma':
        p=prod.passes
        big={4:8,8:12}[p]; ovl={4:6,8:10}[p]; war={4:3,8:7}[p]
        if cons.cls=='mfma':
            if pd&set(cons.srcAB): n=max(n,big)
            if pd&set(cons.srcC):
                if not (cons.srcC==prod.dst and cons.mn==prod.mn): n=max(n,ovl)
            elif pd&set(cons.dst): n=max(n,ovl)
        else:
            if pd&(set(cons.src)|set(cons.dst)): n=max(n,big)
            if cons.cls=='valu' and set(prod.srcC)&set(cons.dst): n=max(n,war)
    elif prod.cls=='vmem' and prod.wide:
        if set(prod.store_data)&set(cons.dst): n=max(n,2)
    elif prod.cls=='salu':
        if ('s','m0') in pd and cons.cls=='vmemlds': n=max(n,1)
    return n

class Asm:
    def __init__(self):
        self.lines=[]
        self.vm=[]
        self.lg=[]
        self.nlab=0
    def raw(self,s): self.lines.append(('r',s))
    def label(self,l,nopad=False): self.lines.append(('n' if nopad else 'l',l))
    def newlabel(self,p='L'):
        self.nlab+=1; return f'{p}_{self.nlab}'
    def e(self,s,tag=None):
        for ln in s.strip().split('\n'):
            ln=ln.strip()
            if not ln: continue
            self.lines.append(('i',ln))
            mn=ln.split()[0]
            if mn.startswith(('buffer_','global_')): self.vm.append(tag)
            elif mn.startswith('ds_'): self.lg.append(tag)
    def wait_vm(self,tag=None):
        if tag is None:
            self.e('s_waitcnt vmcnt(0)'); self.vm=[]; return
        idx=[i for i,t in enumerate(self.vm) if t==tag]
        if not idx: return
        n=len(self.vm)-1-idx[-1]
        assert n<=63
        self.e(f's_waitcnt vmcnt({n})'); self.vm=self.vm[idx[-1]+1:]
    def wait_lg(self,tag=None):
        if tag is None:
            self.e('s_waitcnt lgkmcnt(0)'); self.lg=[]; return
        idx=[i for i,t in enumerate(self.lg) if t==tag]
        if not idx: return
        n=len(self.lg)-1-idx[-1]
        n=min(n,15)
        self.e(f's_waitcnt lgkmcnt({n})'); self.lg=self.lg[len(self.lg)-n:] if n else []
    def reset_track(self): self.vm=[]; self.lg=[]
    def text(self):
        out=[]; hist=[]
        def flush():
            n=0; d=0
            for p in reversed(hist):
                w=0
                if p.cls=='mfma': w={4:8,8:12}[p.passes]
                elif p.cls=='valu':
                    w=5 if any(r[0]=='s' for r in p.dst) else 2
                    if p.mn.startswith('v_dot2'): w=3
                elif p.cls=='vmem' and p.wide: w=2
                elif p.cls=='salu' and ('s','m0') in p.dst: w=1
                n=max(n,w-d); d+=states_of(p)
                if d>20: break
            return n
        def pad(n):
            while n>0:
                k=min(n,16); t=f's_nop {k-1}'; out.append('  '+t); hist.append(Ins(t)); n-=k
        for kind,s in self.lines:
            if kind=='r': out.append(s); continue
            if kind=='n':
                out.append(s+':'); continue
            if kind=='l':
                pad(flush()); out.append(s+':'); hist.clear(); continue
            ins=Ins(s)
            n=0; d=0
            for p in reversed(hist):
                w=need(p,ins)
                if w-d>n: n=w-d
                d+=states_of(p)
                if d>20: break
            if ins.mn.startswith(('s_cbranch','s_branch')) and 'nopad' not in s:
                n=max(n,flush()-1)
            pad(n)
            out.append('  '+s); hist.append(ins)
            if len(hist)>40: del hist[:10]
        return '\n'.join(out)+'\n'

def vr(b,n=1,k='v'):
    return f'{k}{b}' if n==1 else f'{k}[{b}:{b+n-1}]'
def R(x,n=1):
    if x<256:
        assert x+n<=256
        return vr(x,n,'v')
    return vr(x-256,n,'a')
def sr(b,n=1): return vr(b,n,'s')
```

```python
from common import *
SCL=(128**-0.5)*1.4426950408889634
def gen_att(a):
    sH='s41'
    a.e(f's_lshl_b32 {sH}, s42, 2\ns_add_u32 {sH}, {sH}, {sWave}')
    va=VA(1,256)
    vL16=va.get(); vZ=va.get(); vFA=va.get(); vFB=va.get(); vF=va.get(); vKM=va.get(); vL8=va.get(); T=va.get(4,2)
    km=va.get(32,4); vm=va.get(8,4); vF2=va.get()
    bias=va.get(16,4); S=va.get(16,4); Sm=va.get(16,4); P=va.get(12,4)
    o=[va.get(16,4) for _ in range(4)]
    SET=[256,256+96]
    a.e(f'v_lshlrev_b32 v{vL16}, 4, v0\nv_mov_b32 v{vZ}, 0\nv_lshlrev_b32 v{vL8}, 3, v0')
    a.e(f'v_and_b32 v{T}, 7, v0\nv_min_u32 v{T}, 5, v{T}\nv_and_b32 v{T+1}, 1, v{T}\nv_lshrrev_b32 v{T}, 1, v{T}\nv_lshlrev_b32 v{vFA}, {FSH+6}, v{T}\nv_lshl_add_u32 v{vFA}, v{T+1}, {FSH}, v{vFA}')
    lsel(a,'s43',[FLAG(0,ST_QKV),FLAG(1,ST_QKV)]); a.e(f's_lshl_b32 s44, {sH}, {FSH+1}\ns_add_u32 s43, s43, s44\nv_add_u32 v{vFA}, s43, v{vFA}')
    lsel(a,'s43',[FLAG(0,ST_CH),FLAG(1,ST_CH)]); a.e(f's_lshl_b32 s44, {sH}, {FSH}\ns_add_u32 s43, s43, s44')
    a.e(f'v_mov_b32 v{vFB}, s43')
    lsel(a,'s37',[FLAG(0,ST_ATT),FLAG(1,ST_ATT)]); a.e(f's_lshl_b32 s44, {sH}, {FSH}\ns_add_u32 s37, s37, s44')
    lsel(a,'s32',QKV); a.e(f's_lshl_b32 s44, {sH}, 13\ns_add_u32 s32, s32, s44')
    lsel(a,'s36',O); a.e('s_add_u32 s36, s36, s44')
    lsel(a,'s33',KVM); a.e(f's_lshl_b32 s44, {sH}, 12\ns_add_u32 s33, s33, s44')
    a.e(f'v_lshrrev_b32 v{T}, 5, v0\nv_and_b32 v{vKM}, 7, v0\nv_lshlrev_b32 v{vKM}, 4, v{vKM}\nv_lshl_add_u32 v{vKM}, v{T}, 7, v{vKM}')
    a.e(f'v_and_b32 v{T+1}, 31, v0\nv_lshlrev_b32 v{T}, 2, v{T}\nv_sub_u32 v{T}, v{T+1}, v{T}\nv_mov_b32 v{T+1}, {hex(f2u(-1e30))}')
    for i in range(16):
        a.e(f'v_cmp_le_i32 vcc, {8*(i>>2)+(i&3)}, v{T}\nv_cndmask_b32 v{bias+i}, v{T+1}, v{vZ}, vcc')
    a.e(f's_mov_b32 s35, {hex(f2u(SCL))}\ns_mov_b32 {sItem}, 0')
    def ld(st,n):
        m,i=n//8,n%8
        a.e(f's_add_u32 s44, s32, {m*256*KB+(i//4)*4096}')
        a.e(f'buffer_load_dwordx4 {R(SET[st]+4*n,4)}, v{vL16}, {WS}, s44 offen offset:{(i%4)*1024} sc1')
    def cld(st,n):
        sk=a.newlabel('att_l')
        a.e(f's_cbranch_vccz {sk} ; nopad'); ld(st,n); a.label(sk,nopad=True)
    a.e(f's_mov_b32 {sNeed}, 1')
    poll_block(a,vFA,sNeed,vF,6)
    for n in range(24): ld(0,n)
    a.e(f's_add_u32 s32, s32, {QKVB}')
    pinit(a)
    top=a.newlabel('att_top'); a.label(top)
    NC=OPT.get('attnc',12)
    for st in range(2):
        a.reset_track()
        q,k,v=SET[st],SET[st]+32,SET[st]+64
        a.e(f's_add_u32 {sNeed}, {sItem}, 1')
        pt(a,0)
        a.e('s_waitcnt vmcnt(8)')
        for ks in range(8):
            a.e(f'v_mfma_f32_32x32x16_bf16 {vr(S,16)}, {R(k+4*ks,4)}, {R(q+4*ks,4)}, {vr(bias,16) if ks==0 else vr(S,16)}')
        pt(a,1)
        poll_block(a,vFB,sNeed,vF,7,sleep=0)
        stamp(a,T,vZ,0); pt(a,2)
        for ks in range(8): a.e(f'buffer_load_dwordx4 {vr(km+4*ks,4)}, v{vKM}, {WS}, s33 offen offset:{ks*256} sc1',tag=('km',ks))
        for et in range(4): a.e(f'buffer_load_dwordx2 {vr(vm+2*et,2)}, v{vL8}, {WS}, s33 offen offset:{2048+et*512} sc1',tag='vm')
        a.e(f'buffer_load_dword v{vF2}, v{vFA}, {WS}, 0 offen sc1',tag='vm')
        a.e(f's_add_u32 s33, s33, {KVMB}\ns_add_u32 {sNeed}, {sItem}, 2')
        m=T
        a.e(f'v_max3_f32 v{m}, v{S}, v{S+1}, v{S+2}')
        for i in range(3,15,2): a.e(f'v_max3_f32 v{m}, v{m}, v{S+i}, v{S+i+1}')
        a.e(f'v_max_f32 v{m}, v{m}, v{S+15}')
        for ks in range(8):
            a.wait_vm(('km',ks))
            a.e(f'v_mfma_f32_32x32x16_bf16 {vr(Sm,16)}, {vr(km+4*ks,4)}, {R(q+4*ks,4)}, {"0" if ks==0 else vr(Sm,16)}')
        a.wait_vm('vm')
        pt(a,3)
        flag_check(a,vF2,sNeed); a.e('s_cselect_b64 vcc, -1, 0')
        nl=[0]
        def pf(n=1):
            for _ in range(n):
                if nl[0]<NC: cld(1-st,nl[0]); nl[0]+=1
        pf(2)
        a.e(f'v_max3_f32 v{m}, v{m}, v{Sm}, v{Sm+1}\nv_max3_f32 v{m}, v{m}, v{Sm+2}, v{Sm+3}')
        a.e(f'v_mov_b32 v{m+1}, v{m}\nv_permlane32_swap_b32 v{m}, v{m+1}\nv_max_f32 v{m}, v{m}, v{m+1}\nv_mul_f32 v{m}, s35, v{m}')
        vals=[S+i for i in range(16)]+[Sm+i for i in range(4)]
        for x in vals: a.e(f'v_fma_f32 v{x}, v{x}, s35, -v{m}')
        pf()
        for i,x in enumerate(vals):
            a.e(f'v_exp_f32 v{x}, v{x}')
            if i%8==7: pf()
        cvt_pack(a,P,S,16); cvt_pack(a,P+8,Sm,4)
        adds=[f'v_add_f32 v{m}, v{vals[0]}, v{vals[1]}']+[f'v_add_f32 v{m}, v{m}, v{x}' for x in vals[2:]]
        adds+=[f'v_mov_b32 v{m+1}, v{m}',f'v_permlane32_swap_b32 v{m}, v{m+1}',f'v_add_f32 v{m}, v{m}, v{m+1}',f'v_rcp_f32 v{m}, v{m}']
        def fill(n):
            for _ in range(n):
                if adds: a.e(adds.pop(0))
        def epi(et):
            r=[f'v_mul_f32 v{o[et]+i}, v{o[et]+i}, v{m}' for i in range(16)]
            r+=[f'v_cvt_pk_bf16_f32 v{km+8*et+i}, v{o[et]+2*i}, v{o[et]+2*i+1}' for i in range(8)]
            for h in range(2):
                ks=2*et+h
                r.append(f'buffer_store_dwordx4 {vr(km+8*et+4*h,4)}, v{vL16}, {WS}, {"s36" if ks<4 else "s45"} offen offset:{(ks%4)*1024} sc1')
            return r
        a.e('s_add_u32 s45, s36, 4096')
        for et in range(4):
            for kt in range(3):
                if kt<2: a.e(f'v_mfma_f32_32x32x16_bf16 {vr(o[et],16)}, {R(v+8*et+4*kt,4)}, {vr(P+4*kt,4)}, {"0" if kt==0 else vr(o[et],16)}')
                else:
                    a.e(f'v_mfma_f32_32x32x8_bf16 {vr(o[et],16)}, {vr(vm+2*et,2)}, {vr(P+8,2)}, {vr(o[et],16)}')
                fill(6)
                if et<2: pf()
            if et>=1: adds+=epi(et-1)
        pf(99)
        adds+=epi(3)
        fill(999)
        a.e(f's_add_u32 s36, s36, {OB}')
        stamp(a,T,vZ,1); pt(a,4)
        a.e(f's_add_u32 {sItem}, {sItem}, 1')
        blk=a.newlabel('att_b'); nx=a.newlabel('att_n')
        a.e(f's_cbranch_vccz {blk}')
        for n in range(NC,24): ld(1-st,n)
        a.e(f's_waitcnt vmcnt({24-NC})')
        publish(a,T,vZ,'s37',sItem,WS)
        a.e(f's_branch {nx}')
        a.label(blk)
        a.e('s_waitcnt vmcnt(0)')
        publish(a,T,vZ,'s37',sItem,WS)
        a.e(f's_cmp_ge_u32 {sItem}, 64'); a.e('s_cbranch_scc1 att_fin')
        poll_block(a,vFA,sNeed,vF,6)
        for n in range(24): ld(1-st,n)
        a.label(nx)
        a.e(f's_add_u32 s32, s32, {QKVB}')
        pt(a,5); pacc(a,6)
    a.e(f's_branch {top}')
    a.label('att_fin')
    pdump(a,T)
    a.e('s_branch L_end')
```

```python
from common import *
import common
LWB=36864; MEMB=147456; QB=MEMB+10240; KBF=QB+2048; SX=KBF+2048
SCL=(128**-0.5)*1.4426950408889634
def fx(M,j2,ks): return M*20+j2*10+ks
def fz(t,ks): return 60+2*t+ks
NSL=7
XSEQ=[(M,j,ks) for ks in range(10) for M,j in ((0,0),(0,1),(2,0),(1,0),(1,1),(2,1))]
XF=[fx(*x) for x in XSEQ]
ZORD=[8,9,0,1,2,3,4,5,6,7]
ZSEQ=[(t,ks) for t in ZORD for ks in range(2)]
ZF=[fz(*x) for x in ZSEQ]
WIN_A=[(XF[0],2),(XF[1],3),(XF[2],4),(XF[3],6),(XF[6],5)]
PRE_L=[(XF[4],0),(XF[5],1)]
LIDX=[10,13,16,19,22,25,28,31,34,37,40,43,46,49,52,55]
LDSF=[f for f,_ in PRE_L]+[XF[i] for i in LIDX]
WIN_B=[XF[48]]
WIN_C=[(ZF[0],6),(ZF[1],1),(ZF[2],5),(ZF[3],0),(ZF[18],2),(ZF[19],3)]
RES=[f for f in range(80) if f not in [x for x,_ in WIN_A+WIN_C]+WIN_B+LDSF]
assert len(RES)==50 and len(LDSF)==18
STRM=[x for x,_ in WIN_A]+WIN_B+[x for x,_ in WIN_C]
assert len(STRM)==12
POOL=56
def slot(i): return POOL+8*i
RLOC={}
for i,f in enumerate(RES): RLOC[f]= 256+8*i if i<32 else 112+8*(i-32)
sH,sCF,sKV,sKVM,sPMs,sPLs,sMw,sMz,sFo='s41','s42','s43','s44','s45','s46','s47','s49','s37'
sPMr,sPLr='s32','s33'
def gen_chain(a):
    a.e(f's_lshr_b32 {sLayer}, {sRole}, 5\ns_and_b32 {sH}, {sRole}, 31')
    if OPT.get('layers',2)==1:
        a.e(f's_cmp_eq_u32 {sLayer}, 1'); a.e('s_cbranch_scc1 L_end')
    a.e(f's_lshl_b32 {sCF}, {sH}, 2\ns_add_u32 {sCF}, {sCF}, {sWave}\ns_mul_i32 {sCF}, {sCF}, {160*KB}\ns_add_u32 {sCF}, {sCF}, {CF}')
    a.e('v_lshlrev_b32 v1, 4, v0')
    lsel(a,'s63',SF); a.e(f's_lshl_b32 s61, {sH}, 2\ns_add_u32 s61, s61, {sWave}\ns_mul_i32 s61, s61, {24*KB}\ns_add_u32 s63, s63, s61')
    for i,f in enumerate(STRM):
        a.e(f's_add_u32 s60, {sCF}, {f*2048}')
        a.e(f'buffer_load_dwordx4 {vr(8+8*i,4)}, v1, {WS}, s60 offen\nbuffer_load_dwordx4 {vr(12+8*i,4)}, v1, {WS}, s60 offen offset:1024')
    for f in RES:
        a.e(f's_add_u32 s60, {sCF}, {f*2048}')
        a.e(f'buffer_load_dwordx4 {R(RLOC[f],4)}, v1, {WS}, s60 offen\nbuffer_load_dwordx4 {R(RLOC[f]+4,4)}, v1, {WS}, s60 offen offset:1024')
    a.e(f's_mul_i32 s61, {sWave}, {LWB}')
    for i,f in enumerate(LDSF):
        a.e(f's_add_u32 s60, {sCF}, {f*2048}\ns_add_u32 s62, s61, {i*2048}\ns_mov_b32 m0, s62')
        a.e(f'buffer_load_dwordx4 v1, {WS}, s60 offen lds\nbuffer_load_dwordx4 v1, {WS}, s60 offen offset:1024 lds')
    a.e('s_waitcnt vmcnt(0)')
    for i,f in enumerate(STRM):
        a.e(f's_add_u32 s60, s63, {i*2048}')
        a.e(f'buffer_store_dwordx4 {vr(8+8*i,4)}, v1, {WS}, s60 offen\nbuffer_store_dwordx4 {vr(12+8*i,4)}, v1, {WS}, s60 offen offset:1024')
    a.e(f's_mov_b32 {sCF}, s63')
    common.wait_all_registered(a,2,3,stop_slot=sLayer)
    a.e('s_cmp_ge_u32 s58, 32\ns_cselect_b32 s63, 1, 0')
    if OPT.get('slow',0): a.e('s_mov_b32 s63, 0')
    a.e(f's_lshl_b32 s60, {sWave}, 1\ns_add_u32 s60, s60, s63')
    for w in range(4):
        for fast in (0,1):
            a.e(f's_cmp_eq_u32 s60, {2*w+fast}'); a.e(f's_cbranch_scc1 CH_{w}_{fast}')
    a.e('s_branch L_end')
    for w in range(4):
        for fast in (0,1):
            a.label(f'CH_{w}_{fast}'); a.reset_track()
            chain_wave(a,w,fast)

def chain_wave(a,w,fast):
    RS='' if fast else ' sc1'
    FW=3
    va=VA(0,POOL)
    vAR=va.get()
    vLM=va.get()
    vIdx=va.get(); vLW=va.get(); vQW=va.get(); vQR=va.get(); vKR=va.get(); vOW=va.get()
    vVX=va.get(); vPM=va.get(); vPL=va.get(); vRO=va.get(); vFA=va.get(); vVM=va.get()
    T=va.get(6,2); selr=va.get(4,4)
    ar=va.get(8,4); acc=va.get(24,4)
    assert acc==ar+8 and acc+24==POOL
    X=acc
    vF=T+1
    c,g=T,T+1
    a.e(f'v_and_b32 v{c}, 15, v0\nv_lshrrev_b32 v{g}, 4, v0')
    a.e(f'v_bfe_u32 v{T+2}, v0, 1, 1\nv_mul_u32_u24 v{vIdx}, 0xaaaa, v{T+2}\nv_add_u32 v{vIdx}, 0x4444, v{vIdx}')
    a.e(f'v_add_u32 v{vLW}, {w*LWB}, v1\nv_add_u32 v{vLM}, {MEMB}, v1')
    a.e(f'v_lshrrev_b32 v{T+3}, 3, v{c}\nv_lshlrev_b32 v{vQW}, 8, v{T+3}\nv_lshl_add_u32 v{vQW}, v{T+2}, 7, v{vQW}\nv_lshl_add_u32 v{vQW}, v{g}, 5, v{vQW}')
    a.e(f'v_and_b32 v{T+4}, 1, v0\nv_lshl_add_u32 v{vQW}, v{T+4}, 2, v{vQW}\nv_bfe_u32 v{T+5}, v0, 2, 1\nv_lshl_add_u32 v{vQW}, v{T+5}, 3, v{vQW}\nv_add_u32 v{vQW}, {QB+w*512}, v{vQW}')
    a.e(f'v_and_b32 v{vQR}, 7, v0\nv_lshlrev_b32 v{vQR}, 4, v{vQR}\nv_lshl_add_u32 v{vQR}, v{g}, 7, v{vQR}\nv_add_u32 v{vQR}, {QB}, v{vQR}')
    SXO=SX-QB
    if w<2:
        a.e(f'v_and_b32 v{vKR}, 7, v0\nv_lshl_add_u32 v{vKR}, v{T+3}, 4, v{vKR}\nv_add_u32 v{vKR}, {8*w}, v{vKR}\nv_lshlrev_b32 v{vKR}, 4, v{vKR}\nv_lshl_add_u32 v{vKR}, v{g}, 9, v{vKR}')
    else:
        a.e(f'v_lshrrev_b32 v{vKR}, 2, v{c}\nv_lshl_add_u32 v{vKR}, v{vKR}, 1, v{T+4}\nv_lshlrev_b32 v{vKR}, 4, v{vKR}\nv_lshl_add_u32 v{vKR}, v{g}, 7, v{vKR}\nv_add_u32 v{vKR}, {KBF}, v{vKR}')
    a.e(f'v_bfe_u32 v{vOW}, v0, 1, 2\nv_lshl_add_u32 v{vOW}, v{vOW}, 2, v{T+4}\nv_bfe_u32 v{vVX}, v0, 4, 1\nv_lshl_add_u32 v{vOW}, v{vVX}, 1, v{vOW}')
    a.e(f'v_lshrrev_b32 v{vVM}, 5, v0\nv_lshl_add_u32 v{vOW}, v{vVM}, 4, v{vOW}\nv_lshlrev_b32 v{vOW}, 4, v{vOW}\nv_add_u32 v{vOW}, {QB+((w>>1)*64+2*(w&1)*16)*16}, v{vOW}')
    a.e(f'v_lshlrev_b32 v{vVM}, 8, v{vVM}\nv_lshl_add_u32 v{vVM}, v{c}, 3, v{vVM}\nv_lshl_add_u32 v{vVM}, v{vVX}, 2, v{vVM}\nv_add_u32 v{vVM}, {SX+w*512}, v{vVM}')
    a.e(f'v_lshlrev_b32 v{vVX}, 4, v{c}\nv_lshl_add_u32 v{vVX}, v{g}, 9, v{vVX}\nv_add_u32 v{vVX}, {256*KB+w*2048}, v{vVX}')
    a.e(f'v_lshlrev_b32 v{vPM}, 13, v{g}\nv_lshl_add_u32 v{vPM}, v{c}, 4, v{vPM}\nv_add_u32 v{vPM}, {w*65536}, v{vPM}')
    a.e(f'v_lshrrev_b32 v{vPL}, 5, v0\nv_lshlrev_b32 v{vPL}, 13, v{vPL}\nv_and_b32 v{X}, 31, v0\nv_lshl_add_u32 v{vPL}, v{X}, 3, v{vPL}\nv_add_u32 v{vPL}, {w*16384}, v{vPL}')
    if w==0:
        a.e(f'v_lshlrev_b32 v{vRO}, 3, v0\ns_and_b32 s60, {sH}, 1\ns_lshl_b32 s60, s60, 6\nv_xor_b32 v{vRO}, s60, v{vRO}\ns_lshl_b32 s60, {sH}, 8\nv_add_u32 v{vRO}, s60, v{vRO}')
    if w==1:
        a.e(f'v_and_b32 v{vRO}, 7, v0\nv_lshlrev_b32 v{vRO}, 3, v{vRO}\nv_lshl_add_u32 v{vRO}, v{g}, 7, v{vRO}\ns_bfe_u32 s60, {sH}, 0x10001\ns_lshl_b32 s60, s60, 6\nv_add_u32 v{vRO}, s60, v{vRO}')
        a.e(f'v_lshlrev_b32 v{X}, 6, v{T+3}\nv_xor_b32 v{vRO}, v{X}, v{vRO}\nv_lshl_add_u32 v{vRO}, v{T+3}, 8, v{vRO}')
        a.e(f's_lshr_b32 s60, {sH}, 2\ns_lshl_b32 s60, s60, 10\ns_and_b32 s61, {sH}, 1\ns_lshl_b32 s61, s61, 9\ns_add_u32 s60, s60, s61\ns_add_u32 s60, s60, 8192\nv_add_u32 v{vRO}, s60, v{vRO}')
    if w<2:
        for i in range(4):
            a.e(f'v_mov_b32 v{selr+i}, 0\nv_cmp_eq_u32 vcc, {2*i}, v{c}\nv_mov_b32 v{X}, 0x3f80\nv_cndmask_b32 v{selr+i}, v{selr+i}, v{X}, vcc')
            a.e(f'v_cmp_eq_u32 vcc, {2*i+1}, v{c}\nv_mov_b32 v{X}, 0x3f800000\nv_cndmask_b32 v{selr+i}, v{selr+i}, v{X}, vcc')
    lsel(a,'s60',[FLAG(0,ST_QKV),FLAG(1,ST_QKV)],64<<FSH)
    a.e(f's_lshl_b32 s61, {sH}, {FSH+1}\ns_add_u32 s60, s60, s61')
    a.e(f'v_lshlrev_b32 v{vFA}, {FSH}, v{T+4}\nv_lshl_add_u32 v{vFA}, v{T+2}, {FSH+6}, v{vFA}\nv_add_u32 v{vFA}, s60, v{vFA}')
    lsel(a,sFo,[FLAG(0,ST_CH),FLAG(1,ST_CH)]); a.e(f's_lshl_b32 s61, {sH}, {FSH}\ns_add_u32 {sFo}, {sFo}, s61')
    lsel(a,sKV,QKV,256*KB); a.e(f's_lshl_b32 s61, {sH}, 13\ns_add_u32 {sKV}, {sKV}, s61')
    lsel(a,sKVM,KVM,-MEMB); a.e(f's_lshl_b32 s61, {sH}, 12\ns_add_u32 {sKVM}, {sKVM}, s61')
    a.e(f's_sub_u32 {sCF}, {sCF}, {MEMB}')
    if OPT.get('fakew',0): a.e(f's_mov_b32 {sCF}, {CF-MEMB+w*160*KB}')
    lsel(a,sPMs,[PM(0),PM(1)]); a.e(f's_lshl_b32 s61, {sH}, 13\ns_add_u32 {sPMr}, {sPMs}, s61\ns_sub_u32 {sPMr}, {sPMr}, {MEMB}\ns_lshl_b32 s61, {sH}, 8\ns_add_u32 {sPMs}, {sPMs}, s61')
    lsel(a,sPLs,[PL(0),PL(1)]); a.e(f's_and_b32 s61, {sH}, 7\ns_lshl_b32 s61, s61, 13\ns_add_u32 {sPLr}, {sPLs}, s61\ns_sub_u32 {sPLr}, {sPLr}, {MEMB}')
    a.e(f's_lshl_b32 s61, {sH}, 8\ns_add_u32 {sPLs}, {sPLs}, s61')
    a.e(f's_mov_b32 s24, s4\ns_mov_b32 s25, s5\ns_mov_b32 s27, 0x20000\ns_cmp_lt_u32 {sH}, 8\ns_cselect_b32 s26, s6, 0')
    if w==FW: a.e(f's_mov_b32 s26, 0\nv_lshlrev_b32 v{vKR}, 7, v0')
    a.e('s_mov_b32 s22, 0x55555555\ns_mov_b32 s23, 0x55555555')
    lsel(a,'s34',[MEMR(0),MEMR(1)])
    a.e(f's_mov_b32 s35, {hex(f2u(SCL))}')
    where={}; halves={}
    def sload_ops(f,si,tag):
        def mk(h):
            def go():
                a.e(f's_add_u32 s60, {sCF}, {STRM.index(f)*2048}')
                a.e(f'buffer_load_dwordx4 {vr(slot(si)+4*h,4)}, v{vLM}, {WS}, s60 offen offset:{1024*h}',tag=tag)
                where[f]=(slot(si),'vm',tag); halves[f]=h
            return go
        return [mk(0),mk(1)]
    def sload(f,si,tag):
        for g_ in sload_ops(f,si,tag): g_()
    def lload_ops(f,si):
        o=LDSF.index(f)*2048
        def mk(h):
            def go():
                a.e(f'ds_read_b128 {vr(slot(si)+4*h,4)}, v{vLW} offset:{o+1024*h}',tag=('w',f))
                where[f]=(slot(si),'lg',('w',f)); halves[f]=h
            return go
        return [mk(0),mk(1)]
    def smf(d,A,f):
        if f in RLOC: B=R(RLOC[f],8)
        else:
            r,kind,tag=where[f]; assert halves[f]==1
            (a.wait_vm if kind=='vm' else a.wait_lg)(tag)
            B=vr(r,8)
        a.e(f'v_smfmac_f32_16x16x64_bf16 {vr(d,4)}, {vr(A,4)}, {B}, v{vIdx}')
    def winA():
        for f,si in WIN_A: sload(f,si,'A')
    def preL():
        for f,si in PRE_L:
            for g_ in lload_ops(f,si): g_()
    def kvflag():
        ok=a.newlabel('ch_ok')
        a.e(f's_add_u32 {sNeed}, {sItem}, 1')
        a.e('s_cmp_lg_u32 s21, 0'); a.e(f's_cbranch_scc1 {ok}')
        poll_block(a,vFA,sNeed,vF,8)
        a.label(ok)
    def zero(b,n):
        for i in range(0,n,2): a.e(f'v_mov_b64 {vr(b+i,2)}, 0')
    a.e(f's_mov_b32 {sItem}, 0\ns_add_u32 s66, {sPMr}, 0x40000\ns_add_u32 s67, {sPLr}, 0x10000\ns_mov_b32 {sMz}, s34')
    winA(); a.wait_vm(); preL()
    if w>=2:
        a.e(f'v_lshrrev_b32 v{T+3}, 3, v0\nv_mul_u32_u24 v{T+3}, 1280, v{T+3}\nv_and_b32 v{ar}, 7, v0\nv_and_b32 v{ar+1}, 1, v{g}\nv_lshlrev_b32 v{ar+1}, 2, v{ar+1}\nv_xor_b32 v{ar}, v{ar}, v{ar+1}\nv_lshl_add_u32 v{T+3}, v{ar}, 4, v{T+3}')
        for i in range(5): a.e(f'buffer_load_dwordx4 {vr(acc+4*i,4)}, v{T+3}, {MEM0}, 0 offen offset:{(5*(w-2)+i)*128}')
        a.wait_vm()
        for i in range(5): a.e(f'ds_write_b128 v{vLM}, {vr(acc+4*i,4)} offset:{(5*(w-2)+i)*1024}')
    a.e(f'v_lshl_add_u32 v{ar}, v{g}, 1, v{T+2}\nv_lshlrev_b32 v{ar}, 4, v{ar}\nv_lshl_add_u32 v{ar}, v{T+4}, 7, v{ar}\nv_lshlrev_b32 v{ar+1}, 6, v{T+5}\nv_xor_b32 v{ar}, v{ar}, v{ar+1}')
    a.e(f'v_bfe_u32 v{ar+1}, v0, 2, 2\nv_lshl_add_u32 v{ar}, v{ar+1}, 8, v{ar}\nv_add_u32 v{vAR}, {MEMB}, v{ar}')
    a.e('s_mov_b32 s21, 0\ns_mov_b32 s20, 0')
    if w==FW: kvflag()
    pinit(a)
    top=a.newlabel('ch_top')
    a.label(top)
    zero(acc,24)
    a.e('s_waitcnt lgkmcnt(0)'); a.reset_track()
    if w==1: a.vm=['pub']*4
    a.e('s_barrier')
    stamp(a,T,None,0); pt(a,0)
    def ard(ks): a.e(f'ds_read_b128 {vr(ar+4*(ks%2),4)}, v{vAR} offset:{ks*1024}',tag=('a',ks))
    ard(0); ard(1)
    dq=[]; vq=[]
    lq=[XF[i] for i in LIDX]
    cq=[]
    def kx(k2): return lambda: a.e(f'buffer_load_dwordx4 {vr(slot(2)+4*k2,4)}, v{vKR}, {WS}, {sKV if k2<2 else "s61"} offen offset:{(k2%2)*2048} sc1 nt',tag='kx')
    def vx(j): return lambda: a.e(f'buffer_load_dwordx4 {vr(slot(4)+4*j,4)}, v{vVX}, {WS}, {sKV} offen offset:{j*256} sc1 nt',tag='vx')
    def rs(sb,off,sd=WS): return lambda: a.e(f'buffer_store_dwordx4 {vr(T+2,4)}, v{vLM}, {sd}, {sb} offen offset:{off}{RS}',tag='rs')
    def rsm():
        a.e('s_mov_b32 exec_hi, 0')
        a.e(f'buffer_store_dwordx2 {vr(T+2,2)}, v{vRO}, {WS if w==0 else WST}, {sMz} offen{RS}',tag='rs')
        a.e('s_mov_b64 exec, -1')
    def pubflag():
        a.wait_vm('pub'); publish(a,T,None,sFo,sItem,WS)
    a.e(f's_add_u32 s61, {sKV}, 4096\ns_add_u32 s68, s66, 4096\ns_lshr_b32 s69, {sH}, 3\ns_lshl_b32 s69, s69, 11\ns_add_u32 s69, s69, s67')
    a.e(f'v_mov_b64 {vr(T+2,2)}, -1\nv_mov_b64 {vr(T+4,2)}, -1')
    lastv=-9
    Cslot={si:f for f,si in WIN_C}
    for i,(M,j,ks) in enumerate(XSEQ):
        if i==30: pt(a,1)
        if i==48: pt(a,2)
        if i%6==0: a.wait_lg(('a',ks))
        f=XF[i]
        si=None if f in RLOC else (where[f][0]-POOL)//8
        smf(acc+8*M+4*j,ar+4*(ks%2),f)
        if i%6==5 and ks+2<10: dq.insert(0,(lambda k: (lambda: ard(k)))(ks+2))
        if si in (0,1,5):
            if lq: dq+=lload_ops(lq.pop(0),si)
            else: cq+=sload_ops(Cslot[si],si,('C',si))
        if i==3:
            vq+=sload_ops(WIN_B[0],6,'B0')
            if w<2: vq+=[kx(k) for k in range(4)]
            vq+=[vx(0),vx(1)]
            if w==FW and OPT.get('pf',0):
                vq.append(lambda: a.e(f's_add_u32 s60, {sKV}, {QKVB}\nbuffer_load_dword v{selr+1}, v{vKR}, {WST}, s60 offen sc1{" nt" if OPT.get("pfnt",0) else ""}',tag='pf'))
                vq.append(lambda: a.e(f's_add_u32 s60, {sKV}, {QKVB+256*KB}\nbuffer_load_dword v{selr+1}, v{vKR}, {WST}, s60 offen sc1{" nt" if OPT.get("pfnt",0) else ""}',tag='pf'))
            if w==FW: vq.append(lambda: a.e(f'buffer_load_dword v{selr}, v{vFA}, {WS}, 0 offen sc1',tag='vx'))
            if w==2: vq+=[rs('s66',k*1024) for k in range(4)]+[rs('s69',0)]
            if w==3: vq+=[rs('s68',k*1024) for k in range(4)]+[rs('s69',1024)]
            if w<2: vq+=[rsm]
            if w==1: vq.append(pubflag)
        if f==WIN_B[0]: cq+=sload_ops(Cslot[6],6,('C',6))
        if dq: dq.pop(0)()
        if i-lastv>=OPT.get('vgap',4) or (i-lastv>=2 and i<8):
            if vq: vq.pop(0)(); lastv=i
            elif cq: cq.pop(0)(); lastv=i
    assert not dq and not vq, (len(dq),len(vq))
    if not OPT.get('fakekv',0): a.e(f's_add_u32 {sKV}, {sKV}, {QKVB}')
    def cfill(n):
        for _ in range(n):
            if cq: cq.pop(0)()
    stamp(a,T,None,1); pt(a,3)
    for i in range(4): a.e(f'v_pk_add_f32 {vr(acc+4*i,2)}, {vr(acc+4*i,2)}, {vr(acc+4*i+2,2)}')
    for M in range(2):
        for rho in range(2):
            a.e(f'v_cvt_pk_bf16_f32 v{T+2*M+rho}, v{acc+8*M+rho}, v{acc+8*M+4+rho}')
    for M in range(2):
        for rho in range(2):
            a.e(f'ds_write_b32 v{vQW}, v{T+2*M+rho} offset:{M*2048+rho*16}')
    vm=[acc+16,acc+20]
    for j in range(2):
        a.e(f'v_pk_add_f32 {vr(vm[j],2)}, {vr(vm[j],2)}, {vr(vm[j]+2,2)}')
    for j in range(2):
        a.e(f'v_cvt_pk_bf16_f32 v{vm[j]}, v{vm[j]}, v{vm[j]+1}\nv_mov_b32 v{vm[j]+1}, 0')
    cfill(2)
    a.wait_lg()
    a.e('s_barrier')
    pt(a,4)
    fin=a.newlabel('ch_fin')
    a.e(f's_cmp_ge_u32 {sItem}, 63'); a.e(f's_cbranch_scc1 {fin}')
    if w<3:
        for k2 in range(4):
            a.e(f'ds_read_b128 {vr(acc+4*k2,4)}, v{vQR} offset:{k2*512}',tag=('q',k2))
            if w==2: a.e(f'ds_read_b128 {vr(slot(2)+4*k2,4)}, v{vKR} offset:{k2*512}',tag=('q',k2))
        cfill(2)
        if w<2: a.wait_vm('kx')
        for k2 in range(4):
            a.wait_lg(('q',k2))
            a.e(f'v_mfma_f32_16x16x32_bf16 {vr(ar,4)}, {vr(slot(2)+4*k2,4)}, {vr(acc+4*k2,4)}, {"0" if k2==0 else vr(ar,4)}')
        a.e(f'ds_write_b128 v{vQR}, {vr(ar,4)} offset:{SXO+w*512}')
    else: cfill(2)
    cq+=sload_ops(Cslot[2],2,('C',2))+sload_ops(Cslot[3],3,('C',3))
    cfill(2)
    a.wait_lg()
    a.e('s_barrier')
    pt(a,5)
    s=acc
    a.e(f'ds_read_b128 {vr(s,4)}, v{vQR} offset:{SXO}\nds_read_b128 {vr(s+4,4)}, v{vQR} offset:{SXO+512}\nds_read_b64 {vr(s+8,2)}, v{vQR} offset:{SXO+1024}')
    cfill(2)
    a.wait_lg()
    m=T
    a.e(f'v_max3_f32 v{m}, v{s}, v{s+1}, v{s+2}\nv_max3_f32 v{m+1}, v{s+3}, v{s+4}, v{s+5}\nv_max3_f32 v{m+2}, v{s+6}, v{s+7}, v{s+8}')
    a.e(f'v_max3_f32 v{m}, v{m}, v{m+1}, v{s+9}\nv_max_f32 v{m}, v{m}, v{m+2}')
    def xl(op,x,t):
        a.e(f'v_mov_b32 v{t}, v{x}\nv_permlane32_swap_b32 v{x}, v{t}\n{op} v{x}, v{x}, v{t}')
        a.e(f'v_mov_b32 v{t}, v{x}\nv_permlane16_swap_b32 v{x}, v{t}\n{op} v{x}, v{x}, v{t}')
    xl('v_max_f32',m,m+1)
    a.e(f'v_mul_f32 v{m}, s35, v{m}')
    for i in range(10): a.e(f'v_fma_f32 v{s+i}, v{s+i}, s35, -v{m}')
    cfill(1)
    for i in range(10): a.e(f'v_exp_f32 v{s+i}, v{s+i}')
    cfill(1)
    P=ar; Pm=ar+4; o=acc+8
    cvt_pack(a,P,s,8)
    a.e(f'v_cvt_pk_bf16_f32 v{Pm}, v{s+8}, v{s+9}\nv_mov_b32 v{Pm+1}, 0')
    a.e(f'v_add_f32 v{m}, v{s+8}, v{s+9}')
    pt(a,6)
    a.wait_vm('vx')
    if w==FW:
        a.e(f's_add_u32 {sNeed}, {sItem}, 2')
        flag_check(a,selr,sNeed); a.e('s_cselect_b32 s21, 1, 0')
        a.e(f's_add_u32 {sNeed}, {sItem}, 3')
        flag_check(a,selr,sNeed); a.e('s_cselect_b32 s26, s6, 0')
    for j in range(2): a.e(f'v_mfma_f32_16x16x32_bf16 {vr(o+4*j,4)}, {vr(slot(4)+4*j,4)}, {vr(P,4)}, 0')
    for j in range(2): a.e(f'v_mfma_f32_16x16x16_bf16 {vr(o+4*j,4)}, {vr(vm[j],2)}, {vr(Pm,2)}, {vr(o+4*j,4)}')
    for i in range(0,8,2): a.e(f'v_add_f32 v{s+i}, v{s+i}, v{s+i+1}')
    a.e(f'v_add3_u32 v{m+1}, 0, 0, 0' if False else f'v_add_f32 v{s}, v{s}, v{s+2}\nv_add_f32 v{s+4}, v{s+4}, v{s+6}\nv_add_f32 v{m}, v{m}, v{s}\nv_add_f32 v{m}, v{m}, v{s+4}')
    xl('v_add_f32',m,m+1)
    a.e(f'v_rcp_f32 v{m}, v{m}')
    for i in range(8): a.e(f'v_mul_f32 v{o+i}, v{o+i}, v{m}')
    cvt_pack(a,T+2,o,8)
    a.e(f'ds_write_b128 v{vOW}, {vr(T+2,4)}')
    a.e(f'v_mov_b32 v{T}, v{vm[0]}\nv_mov_b32 v{T+1}, v{vm[1]}')
    za=[acc+4*i for i in range(6)]+[slot(4),slot(4)+4,T+2,acc+8]
    cfill(9)
    zero(acc,24); zero(slot(4),8); zero(T+2,4)
    if w>=2: a.wait_vm('rs')
    a.wait_lg()
    a.e('s_barrier')
    pt(a,7)
    a.e(f'ds_read_b128 {vr(ar,4)}, v{vLM} offset:{QB-MEMB}',tag='z0'); a.e(f'ds_read_b128 {vr(ar+4,4)}, v{vLM} offset:{QB-MEMB+1024}',tag='z1')
    a.e(f'ds_write_b32 v{vVM}, v{T}\nds_write_b32 v{vVM}, v{T+1} offset:128')
    stamp(a,T,None,2)
    a.e(f's_and_b32 s60, {sItem}, 1\ns_lshl_b32 s61, s60, 18\ns_add_u32 s64, {sPMs}, s61\ns_add_u32 s66, {sPMr}, s61\ns_lshl_b32 s61, s60, 16\ns_add_u32 s65, {sPLs}, s61\ns_add_u32 s67, {sPLr}, s61\ns_add_u32 s63, s64, 0x8000\ns_mov_b64 vcc, s[22:23]')
    a.wait_lg('z1')
    fl=[]
    for p in range(10):
        x=za[p]; fl+=[(2*p+4,f'v_add_f32 v{x}, v{x}, v{x+2}'),(2*p+4,f'v_add_f32 v{x+1}, v{x+1}, v{x+3}')]
        if p%2==1:
            x,y=za[p-1],za[p]
            if p==1: d0,d1=y+2,y+3
            else:
                U=za[0] if p<6 else za[3]; q_=((p-3)//2)%2
                d0,d1=U+q_,U+2+q_
            for tx in (f'v_cvt_pk_bf16_f32 v{d0}, v{x}, v{y}',f'v_cvt_pk_bf16_f32 v{d1}, v{x+1}, v{y+1}',f'v_min_u32 v{d0}, -2, v{d0}',f'v_min_u32 v{d1}, -2, v{d1}'):
                fl.append((2*p+4,tx))
            if p==1: fl+=[(0,f'v_cndmask_b32_dpp v{y}, v{d1}, v{d0}, vcc quad_perm:[1,0,3,2] row_mask:0xf bank_mask:0xf'),(0,'s_not_b64 vcc, vcc'),
                          (0,f'v_cndmask_b32_dpp v{y+1}, v{d0}, v{d1}, vcc quad_perm:[1,0,3,2] row_mask:0xf bank_mask:0xf'),
                          (0,f'buffer_store_dwordx2 {vr(y,2)}, v{vPL}, {WS}, s65 offen{RS}')]
            if p==3: fl+=[(0,f'v_mov_b64 {vr(za[9],2)}, 0'),(0,f'v_mov_b64 {vr(za[9]+2,2)}, 0')]
            if p==5: fl.append((0,f'buffer_store_dwordx4 {vr(za[0],4)}, v{vPM}, {WS}, s64 offen{RS}'))
            if p==9: fl.append((0,f'buffer_store_dwordx4 {vr(za[3],4)}, v{vPM}, {WS}, s63 offen{RS}'))
    for k,(t,ks) in enumerate(ZSEQ):
        if k==18: assert not any('v_mov_b64' in x[1] for x in fl)
        smf(za[k//2],ar+4*ks,ZF[k])
        for _ in range(OPT.get('zfill',3)):
            if fl and fl[0][0]<=k: a.e(fl.pop(0)[1],tag='ps')
    for x in fl: a.e(x[1],tag='ps')
    stamp(a,T,None,3); pt(a,8)
    if w>=2:
        if not OPT.get('nowin',0): winA()
        preL()
    a.e(f's_add_u32 {sItem}, {sItem}, 1')
    a.e(f's_and_b32 s60, {sItem}, 3\ns_lshl_b32 s60, s60, 14\ns_add_u32 {sMw}, s34, s60\ns_xor_b32 s60, s60, 0x8000\ns_add_u32 {sMz}, s34, s60')
    def maxtree(b,n,t):
        a.e(f'v_max3_u32 v{t}, v{b}, v{b+1}, v{b+2}')
        i=3
        while i<n:
            if i+1<n: a.e(f'v_max3_u32 v{t}, v{t}, v{b+i}, v{b+i+1}'); i+=2
            else: a.e(f'v_max_u32 v{t}, v{t}, v{b+i}'); i+=1
        a.e(f'v_cmp_eq_u32 vcc, -1, v{t}')
    def mx(first,b,t):
        if first: a.e(f'v_max3_u32 v{t}, v{b}, v{b+1}, v{b+2}\nv_max_u32 v{t}, v{t}, v{b+3}')
        else: a.e(f'v_max3_u32 v{t}, v{t}, v{b}, v{b+1}\nv_max3_u32 v{t}, v{t}, v{b+2}, v{b+3}')
    def tail(L,err):
        a.e(f's_add_u32 {sCnt}, {sCnt}, 1\ns_cmp_lt_u32 {sCnt}, {POLL_LIMIT}'); a.e(f's_cbranch_scc1 {L} ; nopad')
        a.e(f's_mov_b32 {sErr}, {err}'); a.e('s_branch L_fail')
    def pubdata():
        for i in range(4): a.e(f'ds_read_b128 {vr(acc+4*i,4)}, v{vLM} offset:{KBF-MEMB+i*1024}')
        a.wait_lg()
        for i in range(4): a.e(f'buffer_store_dwordx4 {vr(acc+4*i,4)}, v{vLM}, {WS}, {sKVM} offen offset:{i*1024} sc1',tag='pub')
        a.e(f's_add_u32 {sKVM}, {sKVM}, {KVMB}')
    a.e(f's_mov_b32 {sCnt}, 0')
    after=[]
    if w<2:
        n=8; sb='s66' if w==0 else 's67'
        nored=a.newlabel('ch_nr')
        if w==1: a.e(f's_cmp_ge_u32 {sH}, 8'); a.e(f's_cbranch_scc1 {nored}')
        a.e(f's_add_u32 s68, {sb}, 4096')
        if OPT.get('d1',4): a.e(f's_sleep {OPT.get("d1",4)}')
        D4=T+2
        sets=[ar,POOL]
        def iss(b):
            for i in range(8): a.e(f'buffer_load_dwordx4 {vr(b+4*i,4)}, v{vLM}, {WS}, {sb if i<4 else "s68"} offen offset:{(i%4)*1024} sc1')
        def chk(b,base):
            for i in range(8):
                a.e(f's_waitcnt vmcnt({base+7-i})')
                a.e(f'v_mfma_f32_16x16x32_bf16 {vr(D4,4)}, {vr(selr,4)}, {vr(b+4*i,4)}, {"0" if i==0 else vr(D4,4)}')
                mx(i==0,b+4*i,T)
            a.e(f'v_cmp_eq_u32 vcc, -1, v{T}')
        L=a.newlabel('ch_r'); Dn=a.newlabel('ch_rd')
        if OPT.get('dbl',0):
            iss(sets[0])
            a.label(L,nopad=True)
            iss(sets[1]); chk(sets[0],8); pt(a,11); a.e(f's_cbranch_vccz {Dn} ; nopad')
            iss(sets[0]); chk(sets[1],8); a.e(f's_cbranch_vccz {Dn} ; nopad')
        else:
            a.label(L,nopad=True)
            iss(sets[0]); chk(sets[0],0); pt(a,11); a.e(f's_cbranch_vccz {Dn} ; nopad')
        tail(L,9)
        a.label(Dn,nopad=True)
        a.vm=['stale']
        a.e('s_nop 3')
        cvt_pack(a,T,D4,4)
        a.e(f'v_min_u32 v{T}, -2, v{T}\nv_min_u32 v{T+1}, -2, v{T+1}')
        a.e('s_mov_b32 exec_hi, 0')
        a.e(f'buffer_store_dwordx2 {vr(T,2)}, v{vRO}, {WS}, {sMw} offen{RS}')
        a.e('s_mov_b64 exec, -1')
        a.label(nored)
        a.wait_lg()
        a.e('s_barrier')
        pt(a,9)
        stamp(a,T+2,None,4)
        if not OPT.get('nowin',0): winA()
        a.wait_vm('stale')
        preL()
        if w==1:
            if not OPT.get('nopub',0): pubdata()
            a.wait_vm('A')
        else:
            a.wait_vm()
    else:
        a.e(f's_add_u32 s68, {sMw}, {5*(w-2)*1024-MEMB}\ns_add_u32 s69, s68, 4096')
        if w==FW: kvflag()
        a.wait_lg()
        a.e('s_barrier')
        pt(a,9)
        if OPT.get('d2',4): a.e(f's_sleep {OPT.get("d2",4)}')
        L=a.newlabel('ch_m'); Dn=a.newlabel('ch_md'); F=a.newlabel('ch_mf')
        a.label(L,nopad=True)
        for i in range(5): a.e(f'buffer_load_dwordx4 {vr(acc+4*i,4)}, v{vLM}, {WS}, {"s68" if i<4 else "s69"} offen offset:{(i%4)*1024} sc1')
        for i in range(5):
            a.e(f's_waitcnt vmcnt({4-i})')
            a.e(f'ds_write_b128 v{vLM}, {vr(acc+4*i,4)} offset:{(5*(w-2)+i)*1024}')
            mx(i==0,acc+4*i,T)
        a.e(f'v_cmp_eq_u32 vcc, -1, v{T}')
        pt(a,11)
        a.e(f's_cbranch_vccnz {F} ; nopad')
        after.append((F,L))
        a.vm=[]
        stamp(a,T,None,4)
    pt(a,10); pacc(a,11)
    if OPT['ts']==3:
        if OPT.get('diag',0)==0: a.e(f's_add_u32 s95, s95, {sCnt}')
        else: a.e(f's_sub_u32 s97, s92, s{70+2*(8 if w<2 else 9)}\ns_add_u32 s95, s95, s97')
    a.e(f's_branch {top}')
    for F,L in after:
        a.label(F,nopad=True); tail(L,10)
    a.label(fin)
    pdump(a,T)
    a.e(f'ds_write_b32 v{vVM}, v{vm[0]}\nds_write_b32 v{vVM}, v{vm[1]} offset:128')
    a.wait_lg()
    a.e('s_barrier')
    if w==1:
        pubdata()
        a.e('s_waitcnt vmcnt(0)')
        publish(a,T,None,sFo,64,WS)
    a.e('s_branch L_end')
```

```python
from asmb import *
from layout import *
from pre import srd, sdiv, KARG
import struct
def f2u(x): return struct.unpack('<I',struct.pack('<f',x))[0]
WS='s[4:7]'; OUT='s[8:11]'; DBG='s[12:15]'; MEM0='s[16:19]'; WST='s[24:27]'
sRole,sWave='s2','s3'
sItem,sPref,sPend,sNeed='s28','s29','s30','s31'
sCnt,sLayer,sErr='s38','s39','s40'
POLL_LIMIT=40000
OPT={'ts':False}
class VA:
    def __init__(self,start=1,end=256): self.n=start; self.end=end
    def get(self,n=1,al=None):
        al=al or (2 if n>=2 else 1)
        self.n=(self.n+al-1)//al*al
        r=self.n; self.n+=n
        assert self.n<=self.end, 'out of vgprs'
        return r
def flag_check(a,vF,need,bias=None):
    if bias:
        a.e(f'v_add_u32 v{bias[1]}, v{bias[0]}, v{vF}'); vF=bias[1]
    a.e(f'v_cmp_le_u32 vcc, {need}, v{vF}')
    a.e('s_cmp_eq_u64 vcc, -1')
def poll_block(a,vAddr,need,vF,err,sleep=1,bias=None):
    L=a.newlabel('poll'); D=a.newlabel('polld')
    a.e(f's_mov_b32 {sCnt}, 0')
    a.label(L)
    a.e(f'buffer_load_dword v{vF}, v{vAddr}, {WS}, 0 offen sc1')
    a.e('s_waitcnt vmcnt(0)')
    flag_check(a,vF,need,bias)
    a.e(f's_cbranch_scc1 {D}')
    if sleep: a.e(f's_sleep {OPT.get("sleep",2)}')
    a.e(f's_add_u32 {sCnt}, {sCnt}, 1\ns_cmp_lt_u32 {sCnt}, {POLL_LIMIT}')
    a.e(f's_cbranch_scc1 {L}')
    a.e(f's_mov_b32 {sErr}, {err}')
    a.e('s_branch L_fail')
    a.label(D)
    a.vm=[]
def publish(a,vT,vZ,sOff,val,srdn=WST):
    a.e(f'v_mov_b32 v{vT}, {val}')
    a.e('s_mov_b64 exec, 1')
    a.e(f'buffer_store_dword v{vT}, off, {srdn}, {sOff} sc1')
    a.e('s_mov_b64 exec, -1')
def stamp(a,vT,vZ,slot,item=sItem):
    if OPT['ts'] not in (1,2): return
    a.e('s_memrealtime s[98:99]' if OPT['ts']==1 else 's_memtime s[98:99]')
    a.e(f's_lshl_b32 s97, {sRole}, 2\ns_add_u32 s97, s97, {sWave}\ns_lshl_b32 s97, s97, 6\ns_add_u32 s97, s97, {item}\ns_lshl_b32 s97, s97, 5\ns_add_u32 s97, s97, {TSB+slot*4}')
    a.e('s_waitcnt lgkmcnt(0)'); a.lg=[]
    a.e(f'v_mov_b32 v{vT}, s98')
    a.e('s_mov_b64 exec, 1')
    a.e(f'buffer_store_dword v{vT}, off, {WS}, s97')
    a.e('s_mov_b64 exec, -1')
TSB=250*MB
assert WS_END<=TSB
def cvt_pack(a,dst,src,n):
    for i in range(n//2):
        a.e(f'v_cvt_pk_bf16_f32 v{dst+i}, v{src+2*i}, v{src+2*i+1}')
GC0=-2*0.7978845608028654*1.4426950408889634
GC1=GC0*0.044715
def gelu(a,x,n,t,sC0,sC1):
    for i in range(n): a.e(f'v_mul_f32 v{t+i}, v{x+i}, v{x+i}')
    for i in range(n): a.e(f'v_fma_f32 v{t+i}, v{t+i}, {sC1}, {sC0}')
    for i in range(n): a.e(f'v_mul_f32 v{t+i}, v{t+i}, v{x+i}')
    for i in range(n): a.e(f'v_exp_f32 v{t+i}, v{t+i}')
    for i in range(n): a.e(f'v_add_f32 v{t+i}, 1.0, v{t+i}')
    for i in range(n): a.e(f'v_rcp_f32 v{t+i}, v{t+i}')
    for i in range(n): a.e(f'v_mul_f32 v{x+i}, v{x+i}, v{t+i}')
def tile_stats(a,x,s0,t0):
    a.e(f'v_add_f32 v{s0}, v{x}, v{x+1}\nv_mul_f32 v{s0+1}, v{x}, v{x}\nv_fmac_f32 v{s0+1}, v{x+1}, v{x+1}')
    for i in range(2,16):
        a.e(f'v_add_f32 v{s0}, v{s0}, v{x+i}\nv_fmac_f32 v{s0+1}, v{x+i}, v{x+i}')
    a.e(f'v_mov_b32 v{t0}, v{s0}\nv_mov_b32 v{t0+1}, v{s0+1}')
    a.e(f'v_permlane32_swap_b32 v{s0}, v{t0}\nv_permlane32_swap_b32 v{s0+1}, v{t0+1}')
    a.e(f'v_add_f32 v{s0}, v{s0}, v{t0}\nv_add_f32 v{s0+1}, v{s0+1}, v{t0+1}')

def lsel(a,dst,arr,add=0):
    a.e(f's_mul_i32 {dst}, {sLayer}, {hex(arr[1]-arr[0])}\ns_add_u32 {dst}, {dst}, {hex(arr[0]+add)}')

PACC=[50,51,52,53,54,55,56,57,58,59,94,95]
def pinit(a):
    if OPT['ts']!=3: return
    for r in PACC: a.e(f's_mov_b32 s{r}, 0')
    a.e('s_mov_b32 s96, 0')
def pt(a,k):
    if OPT['ts']==3: a.e(f's_memtime s[{70+2*k}:{71+2*k}]')
def pacc(a,n):
    if OPT['ts']!=3: return
    a.e('s_waitcnt lgkmcnt(0)'); a.lg=[]
    sk=a.newlabel('pa')
    a.e(f's_cmp_lt_u32 {sItem}, 6'); a.e(f's_cbranch_scc1 {sk}')
    a.e(f's_sub_u32 s97, s70, s96\ns_add_u32 s{PACC[n-1]}, s{PACC[n-1]}, s97')
    for k in range(n-1):
        a.e(f's_sub_u32 s97, s{72+2*k}, s{70+2*k}\ns_add_u32 s{PACC[k]}, s{PACC[k]}, s97')
    a.label(sk)
    a.e(f's_mov_b32 s96, s{70+2*(n-1)}')
def pdump(a,vT):
    if OPT['ts']!=3: return
    a.e(f's_lshl_b32 s97, {sRole}, 2\ns_add_u32 s97, s97, {sWave}\ns_lshl_b32 s97, s97, 11\ns_add_u32 s97, s97, {TSB}')
    for k,r in enumerate(PACC):
        a.e(f'v_mov_b32 v{vT}, s{r}')
        a.e(f'buffer_store_dword v{vT}, off, {WS}, s97 offset:{4*k}')
```

```python
from common import *
def gen_ks(a,kind):
    wo = kind=='wo'
    NT,NK = (2,32) if wo else (3,27)
    KSW = 256 if wo else 108
    nfr=NT*NK
    va=VA(1,256-4*max(0,nfr-64))
    def wreg(t,k):
        f=t*NK+k
        return R(256+4*f,4) if f<64 else R(256-4*(nfr-64)+4*(f-64),4)
    vL16=va.get(); vZ=va.get(); vFA=va.get(); vFB=va.get(); vF=va.get(); vF2=va.get(); vLD=va.get(); vTok8=va.get(); vOut=va.get(); T=va.get(4,2)
    acc=[va.get(16,4) for _ in range(NT)]
    A=va.get(4*NK,4)
    res=va.get(16,4)
    px=va.get(16,4) if wo else acc[2]
    err=11 if wo else 12
    a.e(f'v_lshlrev_b32 v{vL16}, 4, v0\nv_mov_b32 v{vZ}, 0')
    a.e(f's_mov_b32 s24, s4\ns_mov_b32 s25, s5\ns_mov_b32 s26, s6\ns_mov_b32 s27, 0x20000')
    if wo:
        a.e('s_lshr_b32 s43, s42, 1\ns_lshl_b32 s43, s43, 1\ns_and_b32 s44, s42, 1')
        a.e(f's_lshl_b32 s45, s44, 2\ns_add_u32 s45, s45, {sWave}\ns_lshl_b32 s45, s45, 5')
    else:
        a.e(f's_mul_i32 s43, s42, 3\ns_mul_i32 s45, {sWave}, 27')
    for t in range(NT):
        a.e(f's_add_u32 s46, s43, {t}\ns_min_u32 s46, s46, 19\ns_mul_i32 s46, s46, {KSW}\ns_add_u32 s46, s46, s45\ns_lshl_b32 s46, s46, 10\ns_add_u32 s46, s46, {WN["o" if wo else "w4"][0]}')
        for k in range(NK):
            a.e(f'buffer_load_dwordx4 {wreg(t,k)}, v{vL16}, {WS}, s46 offen offset:{(k%4)*1024}')
            if k%4==3: a.e('s_add_u32 s46, s46, 4096')
    lsel(a,'s32',O if wo else G); a.e('s_lshl_b32 s46, s45, 10\ns_add_u32 s32, s32, s46')
    IB=OB if wo else GB
    if wo:
        lsel(a,'s46',[FLAG(0,ST_ATT),FLAG(1,ST_ATT)]); a.e(f's_lshl_b32 s47, s45, {FSH-3}\ns_add_u32 s46, s46, s47')
        a.e(f'v_and_b32 v{vFA}, 3, v0')
    else:
        lsel(a,'s46',[FLAG(0,ST_G),FLAG(1,ST_G)]); a.e(f'v_min_u32 v{vFA}, 26, v0')
    a.e(f'v_lshlrev_b32 v{vFA}, {FSH}, v{vFA}\nv_add_u32 v{vFA}, s46, v{vFA}')
    if wo: a.e(f's_xor_b32 s48, s44, {sWave}\ns_xor_b32 s48, s48, 1\ns_and_b32 s48, s48, 1')
    else:  a.e(f's_mov_b32 s48, {sWave}')
    a.e('s_add_u32 s49, s43, s48')
    if not wo: a.e('s_cmp_lt_u32 s49, 20\ns_cselect_b32 s26, s6, 0\ns_cselect_b32 s10, s10, 0\ns_min_u32 s49, s49, 19')
    a.e('s_lshl_b32 s60, s49, 11')
    if wo:
        lsel(a,'s33',XIN); a.e('s_add_u32 s33, s33, s60')
        lsel(a,'s36',X1)
        lsel(a,'s34',PX); a.e('s_lshl_b32 s46, s49, 12\ns_add_u32 s34, s34, s46')
        lsel(a,'s37',[FLAG(0,ST_X1),FLAG(1,ST_X1)])
        a.e(f's_lshl_b32 s61, s49, {FSH}\ns_add_u32 s37, s37, s61')
    else:
        lsel(a,'s33',X1); a.e('s_add_u32 s33, s33, s60')
        lsel(a,'s34',X1P); a.e('s_add_u32 s34, s34, s60')
        a.e(f's_mov_b32 s36, {XIN[1]}')
        a.e(f's_lshl_b32 s61, s49, {FSH}\ns_add_u32 s37, s61, {FLAG(1,ST_X)}')
        a.e(f's_cmp_eq_u32 {sLayer}, 0\ns_cselect_b32 s26, s26, 0')
        a.e('s_lshl_b32 s62, s49, 6')
        a.e(f'v_and_b32 v{vOut}, 31, v0\nv_mul_u32_u24 v{vOut}, 1280, v{vOut}\nv_lshrrev_b32 v{T}, 5, v0\nv_lshl_add_u32 v{vOut}, v{T}, 3, v{vOut}')
    a.e(f's_lshl_b32 s61, s49, 8\ns_add_u32 s63, s36, s61\ns_add_u32 s63, s63, {STAT}\ns_add_u32 s36, s36, s60')
    a.e(f'v_and_b32 v{vTok8}, 31, v0\nv_lshlrev_b32 v{vTok8}, 3, v{vTok8}')
    LBUF=NT*4*4096
    def loadA(k):
        if k%4==0: a.e(f's_add_u32 s46, s32, {k*1024}')
        a.e(f'buffer_load_dwordx4 {vr(A+4*k,4)}, v{vL16}, {WS}, s46 offen offset:{(k%4)*1024} sc1')
    a.e(f's_mov_b32 {sItem}, 0\ns_mov_b32 {sPend}, 0\ns_mov_b32 s35, 0\ns_mov_b32 {sNeed}, 1')
    poll_block(a,vFA,sNeed,vF,err)
    for k in range(NK): loadA(k)
    a.e(f's_add_u32 s32, s32, {IB}')
    pinit(a)
    top=a.newlabel('ks_top'); a.label(top); a.reset_track()
    stamp(a,T,vZ,0); pt(a,0)
    nov=a.newlabel('ks_n'); join=a.newlabel('ks_j')
    NR=2 if wo else 4
    for i in range(2): a.e(f'buffer_load_dwordx4 {vr(res+4*i,4)}, v{vL16}, {WS}, s33 offen offset:{i*1024} sc1')
    if not wo:
        for i in range(2): a.e(f'buffer_load_dwordx4 {vr(res+8+4*i,4)}, v{vL16}, {WS}, s34 offen offset:{i*1024} sc1')
    a.e(f's_add_u32 {sNeed}, {sItem}, 2\ns_mov_b32 {sPref}, 0')
    flag_check(a,vF,sNeed)
    a.e(f's_cbranch_scc0 {nov}')
    for Pv in (1,0):
        if Pv: a.e(f's_mov_b32 {sPref}, 1')
        else: a.label(nov)
        extra = NR+(1 if OPT['ts'] in (1,2) else 0)
        for k in range(NK):
            a.e(f's_waitcnt vmcnt({(NK-1 if Pv else NK-1-k)+extra if k<NK-1 or Pv else 0})')
            for t in range(NT):
                a.e(f'v_mfma_f32_32x32x16_bf16 {vr(acc[t],16)}, {wreg(t,k)}, {vr(A+4*k,4)}, {"0" if k==0 else vr(acc[t],16)}')
            if Pv: loadA(k)
            if k==NK//2:
                np_=a.newlabel('ks_np')
                a.e(f's_cmp_eq_u32 {sPend}, 0'); a.e(f's_cbranch_scc1 {np_}')
                a.e(f's_waitcnt vmcnt({k+1+NR if Pv else NR})')
                publish(a,T,vZ,'s37',sItem)
                a.e(f's_mov_b32 {sPend}, 0')
                a.label(np_)
        if Pv:
            a.e(f's_add_u32 s32, s32, {IB}'); a.e(f's_branch {join}')
    a.label(join); a.reset_track()
    stamp(a,T,vZ,1); pt(a,1)
    a.e(f'buffer_load_dword v{vF}, v{vFA}, {WS}, 0 offen sc1')
    a.e(f's_lshl_b32 s46, {sWave}, 12\ns_add_u32 s46, s46, s35\nv_add_u32 v{vLD}, s46, v{vL16}')
    for t in range(NT):
        for i in range(4): a.e(f'ds_write_b128 v{vLD}, {vr(acc[t]+4*i,4)} offset:{t*16384+i*1024}')
    nfin=a.newlabel('ks_nf')
    isfin=f's_cmp_ge_u32 {sWave}, {2 if wo else 3}'
    a.wait_lg()
    a.e('s_barrier')
    pt(a,2)
    a.e(isfin); a.e(f's_cbranch_scc1 {nfin}')
    x=acc[0]; y=acc[1]
    a.e(f's_lshl_b32 s46, s48, 14\ns_add_u32 s46, s46, s35\nv_add_u32 v{vLD}, s46, v{vL16}')
    for i in range(4): a.e(f'ds_read_b128 {vr(x+4*i,4)}, v{vLD} offset:{i*1024}')
    for i in range(4): a.e(f'ds_read_b128 {vr(y+4*i,4)}, v{vLD} offset:{4096+i*1024}',tag=1)
    for i in range(4): a.e(f'ds_read_b128 {vr(px+4*i,4)}, v{vLD} offset:{8192+i*1024}',tag=2)
    a.wait_lg(1)
    for i in range(0,16,2): a.e(f'v_pk_add_f32 {vr(x+i,2)}, {vr(x+i,2)}, {vr(y+i,2)}')
    for i in range(4): a.e(f'ds_read_b128 {vr(y+4*i,4)}, v{vLD} offset:{12288+i*1024}',tag=3)
    a.wait_lg(2)
    for i in range(0,16,2): a.e(f'v_pk_add_f32 {vr(x+i,2)}, {vr(x+i,2)}, {vr(px+i,2)}')
    a.wait_lg(3)
    for i in range(0,16,2): a.e(f'v_pk_add_f32 {vr(x+i,2)}, {vr(x+i,2)}, {vr(y+i,2)}')
    def addbf(src):
        for i in range(8):
            a.e(f'v_lshlrev_b32 v{y+2*i}, 16, v{src+i}\nv_and_b32 v{y+2*i+1}, 0xffff0000, v{src+i}')
        for i in range(0,16,2): a.e(f'v_pk_add_f32 {vr(x+i,2)}, {vr(x+i,2)}, {vr(y+i,2)}')
    done=a.newlabel('ks_dn')
    def reswait():
        l_=a.newlabel('ks_rw')
        a.e(f's_waitcnt vmcnt({NK+1})')
    if wo:
        fz=a.newlabel('ks_fz')
        a.e(f's_and_b32 s46, {sItem}, 3\ns_mul_i32 s46, s46, {PXB}\ns_add_u32 s46, s46, s34')
        a.e(f's_cmp_eq_u32 {sWave}, 1'); a.e(f's_cbranch_scc1 {fz}')
        for i in range(16): a.e(f'v_min_u32 v{x+i}, -2, v{x+i}')
        for i in range(4): a.e(f'buffer_store_dwordx4 {vr(x+4*i,4)}, v{vL16}, {WST}, s46 offen offset:{i*1024} sc1')
        a.e(f's_branch {nfin}')
        a.label(fz)
        reswait()
        addbf(res)
        a.e(f's_mov_b32 {sCnt}, 0')
        L=a.newlabel('ks_px'); D=a.newlabel('ks_pxd')
        a.label(L)
        for i in range(4): a.e(f'buffer_load_dwordx4 {vr(px+4*i,4)}, v{vL16}, {WS}, s46 offen offset:{i*1024} sc1')
        a.wait_vm()
        a.e(f'v_max3_u32 v{T}, v{px}, v{px+1}, v{px+2}')
        for i in range(3,15,2): a.e(f'v_max3_u32 v{T}, v{T}, v{px+i}, v{px+i+1}')
        a.e(f'v_max_u32 v{T}, v{T}, v{px+15}\nv_cmp_eq_u32 vcc, -1, v{T}')
        a.e(f's_cbranch_vccz {D}')
        a.e(f's_add_u32 {sCnt}, {sCnt}, 1\ns_cmp_lt_u32 {sCnt}, {POLL_LIMIT}'); a.e(f's_cbranch_scc1 {L}')
        a.e(f's_mov_b32 {sErr}, 13'); a.e('s_branch L_fail')
        a.label(D)
        for i in range(0,16,2): a.e(f'v_pk_add_f32 {vr(x+i,2)}, {vr(x+i,2)}, {vr(px+i,2)}')
    else:
        reswait()
        addbf(res); addbf(res+8)
    cvt_pack(a,y,x,16)
    if not wo:
        l0=a.newlabel('ks_l0')
        a.e(f's_cmp_eq_u32 {sLayer}, 0'); a.e(f's_cbranch_scc1 {l0}')
        a.e(f's_mul_i32 s46, {sItem}, {32*1280}\ns_add_u32 s46, s46, s62')
        for i in range(4): a.e(f'buffer_store_dwordx2 {vr(y+2*i,2)}, v{vOut}, {OUT}, s46 offen offset:{i*16}')
        a.e(f's_branch {nfin}')
        a.label(l0)
    for i in range(2): a.e(f'buffer_store_dwordx4 {vr(y+4*i,4)}, v{vL16}, {WST}, s36 offen offset:{i*1024} sc1')
    tile_stats(a,x,T,T+2)
    a.e(f'buffer_store_dwordx2 {vr(T,2)}, v{vTok8}, {WST}, s63 offen sc1')
    if wo:
        a.e(f'v_mov_b64 {vr(px,2)}, -1\nv_mov_b64 {vr(px+2,2)}, -1')
        for i in range(4): a.e(f'buffer_store_dwordx4 {vr(px,4)}, v{vL16}, {WST}, s46 offen offset:{i*1024} sc1')
    a.e(f's_mov_b32 {sPend}, 1')
    a.label(nfin); a.reset_track()
    a.e(f's_add_u32 s33, s33, {SEGB}\ns_add_u32 s34, s34, {0 if wo else SEGB}\ns_add_u32 s36, s36, {SEGB}\ns_add_u32 s63, s63, {SEGB}')
    a.e(f's_add_u32 {sItem}, {sItem}, 1\ns_xor_b32 s35, s35, {LBUF}')
    pt(a,3); pacc(a,4)
    np2=a.newlabel('ks_np2')
    a.e(f's_cmp_eq_u32 {sPref}, 0'); a.e(f's_cbranch_scc1 {np2}')
    nst=a.newlabel('ks_ns')
    a.e(isfin); a.e(f's_cbranch_scc1 {nst}')
    a.e('s_waitcnt vmcnt(3)' if not wo else 's_waitcnt vmcnt(4)')
    a.e(f's_branch {top}')
    a.label(nst)
    a.e('s_waitcnt vmcnt(0)')
    a.e(f's_branch {top}')
    a.label(np2)
    a.e('s_waitcnt vmcnt(0)')
    np3=a.newlabel('ks_np3')
    a.e(f's_cmp_eq_u32 {sPend}, 0'); a.e(f's_cbranch_scc1 {np3}')
    publish(a,T,vZ,'s37',sItem)
    a.e(f's_mov_b32 {sPend}, 0')
    a.label(np3)
    fin=a.newlabel('ks_fin')
    a.e(f's_cmp_ge_u32 {sItem}, 64'); a.e(f's_cbranch_scc1 {fin}')
    poll_block(a,vFA,sNeed,vF,err)
    for k in range(NK): loadA(k)
    a.e(f's_add_u32 s32, s32, {IB}')
    a.e(f's_branch {top}')
    a.label(fin)
    pdump(a,T)
    a.e('s_branch L_end')
    a.reset_track()
```

```python
KB=1024; MB=1024*1024
NSEG=64
ST_X,ST_QKV,ST_CH,ST_ATT,ST_PX,ST_X1,ST_H,ST_X1P,ST_G = range(9)
FSH=7
def FLAG(layer,stage): return 64*KB+(layer*9+stage)*(256<<FSH)
CLAIM = 32*KB
TS    = 64*KB
RING  = 1*MB
def PM(c): return RING+c*MB
def PL(c): return RING+c*MB+512*KB
def MEMR(c): return RING+c*MB+640*KB
o=3*MB
WN={}
for name,K,N in (('q',640,4096),('k',640,4096),('v',640,4096),('o',4096,640),('w1',640,640),('w2',640,640),('w3',640,1728),('w4',1728,640)):
    WN[name]=(o,K,N); o+=K*N*2
o=(o+MB-1)//MB*MB
CF=o; o+=32*640*KB
SEGB=48*KB
STAT=40*KB
def alloc(n):
    global o
    r=o; o+=n; return r
XIN=[alloc(NSEG*SEGB) for _ in range(2)]
X1=[alloc(NSEG*SEGB) for _ in range(2)]
HS=[alloc((NSEG+2)*SEGB)+SEGB for _ in range(2)]
X1P=[alloc(NSEG*SEGB) for _ in range(2)]
GB=108*KB
G=[alloc(NSEG*GB) for _ in range(2)]
OB=256*KB
O=[alloc(NSEG*OB) for _ in range(2)]
QKVB=3*256*KB
QKV=[alloc(NSEG*QKVB) for _ in range(2)]
KVMB=32*4*KB
KVM=[alloc(NSEG*KVMB) for _ in range(2)]
PXB=80*KB
PX=[RING+c*MB+704*KB for c in range(2)]
SF=[alloc(3*MB) for _ in range(2)]
WS_END=o
assert WS_END<=256*MB, WS_END
if __name__=='__main__': print(WS_END/MB)

ORDER=[('qk',0,8,0),('qk',8,16,16),('v',16,24,32),('att',24,28,0),('w3',28,32,0),
       ('qk',32,40,8),('qk',40,48,24),('v',48,56,40),('att',56,60,4),('w3',60,63,4),('w1',63,64,0),
       ('wo',64,84,0),('w4',84,91,0),('w2',91,94,0),('w1',94,96,1)]
```

```python
from common import *
LB=49152
LSCR=2*LB
def wreg(t,ks):
    f=t*40+ks
    return R(256+4*f,4) if f<64 else R(192+4*(f-64),4)

def gen_ns(a,kind):
    va=VA(1,192)
    vL16=va.get(); vZ=va.get(); vFA=va.get(); vF=va.get(); vT=va.get(); vRd=va.get(); vSt=va.get(); vC0=va.get()
    vTok8=va.get(); vO=[va.get(),va.get()]; vMu=va.get(2); vS=va.get(2); vS2=va.get(2)
    acc=[va.get(16,4),va.get(16,4)]
    cs=[va.get(16,4),va.get(16,4)]
    ar=va.get(16,4)
    tmp=va.get(32,4)
    res=va.get(16,4)
    pk=va.get(16,4)
    P={'qk':dict(w='q',nv=192,inp=XIN,fin=ST_X,nf=20,fout=ST_QKV,out=QKV,ob=QKVB),
       'v': dict(w='q',nv=192,inp=XIN,fin=ST_X,nf=20,fout=ST_QKV,out=QKV,ob=QKVB),
       'w1':dict(w='w1',nv=10,inp=X1,fin=ST_X1,nf=20,fout=ST_H,out=HS,ob=SEGB),
       'w2':dict(w='w2',nv=10,inp=HS,fin=ST_H,nf=10,fout=ST_X1P,out=X1P,ob=SEGB),
       'w3':dict(w='w3',nv=27,inp=X1P,fin=ST_X1P,nf=10,fout=ST_G,out=G,ob=GB)}[kind]
    err={'qk':1,'v':2,'w1':3,'w2':4,'w3':5}[kind]
    T = kind!='v'
    def sel(dst,arr,add=0):
        lsel(a,dst,arr,add)
    a.e(f's_mov_b32 s24, s4\ns_mov_b32 s25, s5\ns_mov_b32 s27, 0x20000')
    a.e(f's_cmp_lt_u32 s41, {P["nv"]}\ns_cselect_b32 s26, s6, 0\ns_min_u32 s41, s41, {P["nv"]-1}')
    a.e(f'v_lshlrev_b32 v{vL16}, 4, v0\nv_mov_b32 v{vZ}, 0')
    a.e(f's_mul_i32 s42, s41, {80*KB}\ns_add_u32 s42, s42, {WN[P["w"]][0]}')
    for f in range(80):
        a.e(f'buffer_load_dwordx4 {wreg(f//40,f%40)}, v{vL16}, {WS}, s42 offen offset:{(f%4)*1024}')
        if f%4==3: a.e('s_add_u32 s42, s42, 4096')
    a.e(f'v_min_u32 v{vFA}, {P["nf"]-1}, v0\nv_lshlrev_b32 v{vFA}, {FSH}, v{vFA}')
    sel('s42',[FLAG(0,P['fin']),FLAG(1,P['fin'])]); a.e(f'v_add_u32 v{vFA}, s42, v{vFA}')
    QK=kind in('qk','v')
    vBias=va.get(); dum=va.get(4,4)
    if QK:
        sel('s42',[FLAG(0,ST_ATT),FLAG(1,ST_ATT)]); a.e(f's_bfe_u32 s44, s41, 0x50001\ns_lshl_b32 s44, s44, {FSH}\ns_add_u32 s42, s42, s44')
        a.e(f'v_mov_b32 v{vT}, s42\nv_cmp_lt_u32 vcc, 31, v0\nv_cndmask_b32 v{vFA}, v{vFA}, v{vT}, vcc\nv_mov_b32 v{vT}, {OPT.get("lead",5)}\nv_cndmask_b32 v{vBias}, 0, v{vT}, vcc')
    sel('s37',[FLAG(0,P['fout']),FLAG(1,P['fout'])]); a.e(f's_lshl_b32 s42, s41, {FSH}\ns_add_u32 s37, s37, s42')
    sel('s32',P['inp']); a.e(f's_lshl_b32 s43, {sWave}, 10\ns_add_u32 s32, s32, s43')
    if kind=='w2':
        sel('s33',X1); a.e('s_add_u32 s33, s33, s43')
        sel('s45',X1); a.e('s_lshl_b32 s42, s41, 12\ns_add_u32 s45, s45, s42')
    else: a.e('s_mov_b32 s33, s32')
    sel('s36',P['out'], -SEGB if kind=='w1' else 0); a.e('s_lshl_b32 s42, s41, 12\ns_add_u32 s36, s36, s42')
    a.e(f'v_and_b32 v{vTok8}, 31, v0\nv_lshrrev_b32 v{vT}, 5, v0')
    a.e(f'v_mul_u32_u24 v{vSt}, 2560, v{vT}\nv_lshl_add_u32 v{vSt}, v{vTok8}, 3, v{vSt}')
    if kind=='w1':
        for t in range(2):
            a.e(f's_lshl_b32 s42, s41, 1\ns_add_u32 s42, s42, {t}')
            a.e('s_mov_b32 s44, 1\ns_cmp_ge_u32 s42, 5\ns_cselect_b32 s44, -1, s44\ns_cmp_ge_u32 s42, 10\ns_cselect_b32 s44, 2, s44\ns_cmp_ge_u32 s42, 15\ns_cselect_b32 s44, -2, s44')
            a.e(f's_add_u32 s46, s44, 32')
            a.e(f'v_add_u32 v{tmp}, s46, v{vTok8}')
            a.e(f'v_lshrrev_b32 v{tmp+1}, 5, v{tmp}\nv_and_b32 v{tmp+2}, 31, v{tmp}')
            a.e(f'v_mul_u32_u24 v{tmp+1}, {SEGB}, v{tmp+1}\nv_lshl_add_u32 v{tmp+1}, v{tmp+2}, 4, v{tmp+1}\nv_lshl_add_u32 v{vO[t]}, v{vT}, 9, v{tmp+1}')
            a.e(f'v_subrev_u32 v{tmp}, s44, v{vTok8}')
            a.e(f'v_cmp_lt_u32 vcc, 31, v{tmp}')
            a.e(f's_cmp_gt_i32 s44, 0\ns_cselect_b32 s46, 1, 64\ns_mul_i32 s46, s46, {SEGB}\ns_add_u32 s46, s46, s36')
            for i in range(4): a.e(f'v_mov_b32 v{tmp+4+i}, 0')
            a.e('s_mov_b64 exec, vcc')
            a.e(f'buffer_store_dwordx4 v[{tmp+4}:{tmp+7}], v{vL16}, {WST}, s46 offen offset:{t*2048} sc1')
            a.e(f'buffer_store_dwordx4 v[{tmp+4}:{tmp+7}], v{vL16}, {WST}, s46 offen offset:{t*2048+1024} sc1')
            a.e('s_mov_b64 exec, -1')
    a.e(f'v_lshlrev_b32 v{vTok8}, 3, v{vTok8}')
    a.e(f'v_mov_b32 v{vC0}, {hex(f2u(GC0))}\ns_mov_b32 s47, {hex(f2u(GC1))}')
    a.e(f's_mov_b32 s48, {hex(f2u(1/640.))}\ns_mov_b32 s49, {hex(f2u(1e-5))}')
    a.wait_vm()
    if kind!='w2':
        for i in range(4): a.e(f'v_mov_b32 v{ar+i}, 0x3f803f80')
        for t in range(2):
            for ks in range(40):
                c='0' if ks==0 else vr(cs[t],16)
                A,Bq=(wreg(t,ks),vr(ar,4)) if T else (vr(ar,4),wreg(t,ks))
                a.e(f'v_mfma_f32_32x32x16_bf16 {vr(cs[t],16)}, {A}, {Bq}, {c}')
    ND=12
    bias=(vBias,vS2) if (QK and 'att' in OPT['roles']) else None
    def pub():
        publish(a,vT,vZ,'s37',sItem)
        if QK and OPT.get('rr',1):
            a.e(f's_sub_u32 s42, s36, {P["ob"]}')
            for i in range(4): a.e(f'buffer_load_dwordx4 {vr(dum,4)}, v{vL16}, {WS}, s42 offen offset:{i*1024} sc1')
        a.e(f's_mov_b32 {sPend}, 0')
    DORD=[10,11]+list(range(10))
    def dma1(j):
        a.e(f's_add_u32 s46, s44, {j*4096}\ns_mov_b32 m0, s46\ns_add_u32 s46, {"s33" if j>=10 else "s32"}, {j*4096}')
        a.e(f'buffer_load_dwordx4 v{vL16}, {WS}, s46 offen sc1 lds',tag='dma')
    def dma_adv(): a.e(f's_add_u32 s32, s32, {SEGB}\ns_add_u32 s33, s33, {SEGB}')
    def dma():
        for j in DORD: dma1(j)
        dma_adv()
    def set_need(nxt):
        la = 2 if kind=='w2' else 1
        a.e(f's_add_u32 {sNeed}, {sItem}, {nxt+la}')
        if kind=='w2': a.e(f's_min_u32 {sNeed}, {sNeed}, 64')
    def ready_vcc():
        flag_check(a,vF,sNeed,bias)
        a.e(f's_cselect_b64 vcc, -1, 0\ns_cmp_lt_u32 {sItem}, 63\ns_cselect_b64 vcc, vcc, 0')
    pollld=f'buffer_load_dword v{vF}, v{vFA}, {WS}, 0 offen sc1'
    a.e(f's_mov_b32 {sItem}, 0\ns_mov_b32 {sPend}, 0\ns_mov_b32 s35, 0')
    set_need(0)
    poll_block(a,vFA,sNeed,vF,err,bias=bias)
    a.e('s_mov_b32 s44, s43'); dma()
    a.e('s_mov_b32 s34, 1')
    pinit(a)
    top=a.newlabel('ns_top')
    nst={'qk':4,'v':4,'w1':4,'w2':6,'w3':4}[kind]
    nres=4 if kind=='w2' else 0
    a.label(top); a.reset_track()
    st1=a.newlabel('ns_s1')
    a.e('s_cmp_eq_u32 s34, 0'); a.e(f's_cbranch_scc1 {st1}')
    a.e('s_waitcnt vmcnt(6)')
    a.label(st1)
    a.e('s_barrier')
    stamp(a,vT,vZ,0); pt(a,0)
    set_need(1)
    ready_vcc()
    a.e(f's_cmp_eq_u32 s34, 0\ns_cselect_b64 vcc, vcc, 0\ns_and_b32 {sPref}, vcc_lo, 1')
    a.e(f's_xor_b32 s44, s35, {LB}\ns_add_u32 s44, s44, s43')
    a.e(f'v_add_u32 v{vRd}, s35, v{vL16}\nv_add_u32 v{vT}, s35, v{vSt}')
    a.lg=[]
    for i in range(5):
        a.e(f'ds_read_b64 {vr(tmp+4*i,2)}, v{vT} offset:{STAT+(2*i)*256}\nds_read_b64 {vr(tmp+4*i+2,2)}, v{vT} offset:{STAT+(2*i+1)*256}',tag='st')
    def rd(ks): a.e(f'ds_read_b128 {vr(ar+4*(ks%4),4)}, v{vRd} offset:{ks*1024}',tag=('a',ks))
    for ks in range(3): rd(ks)
    def stats_calc():
        a.e(f'v_add_f32 v{vS}, v{tmp}, v{tmp+2}\nv_add_f32 v{vS+1}, v{tmp+1}, v{tmp+3}')
        for i in range(2,10): a.e(f'v_add_f32 v{vS}, v{vS}, v{tmp+2*i}\nv_add_f32 v{vS+1}, v{vS+1}, v{tmp+2*i+1}')
        a.e(f'v_mov_b32 v{vS2}, v{vS}\nv_mov_b32 v{vS2+1}, v{vS+1}')
        a.e(f'v_permlane32_swap_b32 v{vS}, v{vS2}\nv_permlane32_swap_b32 v{vS+1}, v{vS2+1}')
        a.e(f'v_add_f32 v{vS}, v{vS}, v{vS2}\nv_add_f32 v{vS+1}, v{vS+1}, v{vS2+1}')
        a.e(f'v_mul_f32 v{vS}, s48, v{vS}\nv_mul_f32 v{vS+1}, s48, v{vS+1}')
        a.e(f'v_fma_f32 v{vS+1}, -v{vS}, v{vS}, v{vS+1}\nv_max_f32 v{vS+1}, 0, v{vS+1}')
        a.e(f'v_add_f32 v{vS2}, s49, v{vS+1}\nv_rsq_f32 v{vMu}, v{vS2}')
        if kind=='w1':
            a.e(f'v_mul_f32 v{vS2}, v{vMu}, v{vMu}\nv_mul_f32 v{vS2}, v{vS2}, v{vS+1}\nv_add_f32 v{vS2}, s49, v{vS2}\nv_rsq_f32 v{vS2}, v{vS2}\nv_mul_f32 v{vMu}, v{vMu}, v{vS2}')
        a.e(f'v_mul_f32 v{vMu+1}, v{vS}, v{vMu}')
        if kind=='v':
            a.e(f's_lshl_b32 s42, {sWave}, 8\ns_add_u32 s42, s42, {LSCR}')
            a.e(f'v_add_u32 v{vS}, s42, v{vTok8}')
            a.e(f'ds_write_b64 v{vS}, {vr(vMu,2)}',tag='sw')
            a.e(f'v_lshrrev_b32 v{vS+1}, 5, v0\nv_lshlrev_b32 v{vS+1}, 5, v{vS+1}\nv_add_u32 v{vS+1}, s42, v{vS+1}')
            for g in range(4):
                a.e(f'ds_read_b128 {vr(tmp+8*g,4)}, v{vS+1} offset:{g*64}\nds_read_b128 {vr(tmp+8*g+4,4)}, v{vS+1} offset:{g*64+16}',tag='sr')
    def cdma(j):
        sk=a.newlabel('ns_d')
        a.e(f's_cbranch_vccz {sk} ; nopad')
        dma1(j)
        a.label(sk,nopad=True)
    W1=0; PUBK=13; W2=26
    for ks in range(40):
        if ks==13:
            s2_=a.newlabel('ns_s2')
            a.e('s_cmp_eq_u32 s34, 0'); a.e(f's_cbranch_scc1 {s2_} ; nopad')
            a.e('s_waitcnt vmcnt(0)')
            a.label(s2_,nopad=True)
            a.e('s_barrier')
        if ks+3<40: rd(ks+3)
        a.wait_lg(('a',ks))
        for t in range(2):
            c='0' if ks==0 else vr(acc[t],16)
            A,Bq=(wreg(t,ks),vr(ar+4*(ks%4),4)) if T else (vr(ar+4*(ks%4),4),wreg(t,ks))
            a.e(f'v_mfma_f32_32x32x16_bf16 {vr(acc[t],16)}, {A}, {Bq}, {c}')
            if t==0 and W1<=ks<W1+ND: cdma(DORD[ks-W1])
            if t==0 and W2<=ks<W2+ND: cdma(DORD[ks-W2])
        if ks==1: stats_calc()
        if ks==PUBK:
            np_=a.newlabel('ns_np'); w0=a.newlabel('ns_w0')
            a.e(f's_cmp_eq_u32 {sPend}, 0'); a.e(f's_cbranch_scc1 {np_} ; nopad')
            a.e(f's_waitcnt vmcnt({ND})')
            a.e(f's_cbranch_vccnz {w0} ; nopad')
            a.e('s_waitcnt vmcnt(0)')
            a.label(w0,nopad=True)
            pub()
            a.label(np_,nopad=True)
            a.e(pollld)
            if kind=='w2':
                for i in range(4): a.e(f'buffer_load_dwordx4 {vr(res+4*i,4)}, v{vL16}, {WS}, s45 offen offset:{i*1024} sc1')
                a.e(f's_add_u32 s45, s45, {SEGB}')
        if ks==W2-1:
            sk=a.newlabel('ns_sk')
            if kind=='w2': a.e('s_waitcnt vmcnt(0)')
            a.e(f's_mov_b64 vcc, 0\ns_cmp_lg_u32 {sPref}, 0'); a.e(f's_cbranch_scc1 {sk} ; nopad')
            a.e('s_waitcnt vmcnt(0)')
            ready_vcc()
            a.e(f's_and_b32 {sPref}, vcc_lo, 1')
            a.label(sk,nopad=True)
    a.e(pollld)
    a.wait_lg()
    stamp(a,vT,vZ,1); pt(a,1)
    for t in range(2):
        x=acc[t]
        if kind=='w2':
            for i in range(8):
                a.e(f'v_lshlrev_b32 v{tmp+2*i}, 16, v{res+8*t+i}\nv_and_b32 v{tmp+2*i+1}, 0xffff0000, v{res+8*t+i}')
            for i in range(16):
                a.e(f'v_fma_f32 v{tmp+i}, v{tmp+i}, v{vMu}, -v{vMu+1}')
            for i in range(16):
                a.e(f'v_add_f32 v{x+i}, v{x+i}, v{tmp+i}')
        elif T:
            for i in range(16): a.e(f'v_mul_f32 v{tmp+i}, v{vMu+1}, v{cs[t]+i}')
            for i in range(16): a.e(f'v_fma_f32 v{x+i}, v{x+i}, v{vMu}, -v{tmp+i}')
        else:
            for i in range(16): a.e(f'v_mul_f32 v{res+i}, v{tmp+2*i+1}, v{cs[t]}')
            for i in range(16): a.e(f'v_fma_f32 v{x+i}, v{x+i}, v{tmp+2*i}, -v{res+i}')
        if kind in('w1','w3'): gelu(a,x,16,tmp,f'v{vC0}','s47')
        cvt_pack(a,pk+8*t,x,16)
        ov = vO[t] if kind=='w1' else vL16
        a.e(f'buffer_store_dwordx4 {vr(pk+8*t,4)}, v{ov}, {WST}, s36 offen offset:{t*2048} sc1')
        a.e(f'buffer_store_dwordx4 {vr(pk+8*t+4,4)}, v{ov}, {WST}, s36 offen offset:{t*2048+1024} sc1')
        if kind=='w2':
            tile_stats(a,x,tmp+16+2*t,tmp+20)
            a.e(f's_mul_i32 s42, s41, {4096-512}\ns_sub_u32 s42, s36, s42\ns_add_u32 s42, s42, {STAT+t*256}')
            a.e(f'buffer_store_dwordx2 {vr(tmp+16+2*t,2)}, v{vTok8}, {WST}, s42 offen sc1')
    pt(a,2)
    a.e(f's_add_u32 s36, s36, {P["ob"]}')
    a.e(f's_waitcnt vmcnt({nst})')
    ready_vcc()
    a.e(f's_add_u32 {sItem}, {sItem}, 1\ns_xor_b32 s35, s35, {LB}\ns_mov_b32 {sPend}, 1\ns_mov_b32 s34, 0')
    pt(a,3); pacc(a,4)
    npf=a.newlabel('ns_npf')
    a.e(f's_cmp_eq_u32 {sPref}, 0'); a.e(f's_cbranch_scc1 {npf}')
    dma_adv()
    a.e(f's_branch {top}')
    a.label(npf)
    a.e('s_mov_b32 s34, 1')
    blk=a.newlabel('ns_blk')
    a.e(f's_cbranch_vccz {blk}')
    dma()
    a.e(f's_waitcnt vmcnt({ND})')
    pub()
    a.e(f's_branch {top}')
    a.label(blk)
    a.e('s_waitcnt vmcnt(0)')
    pub()
    fin=a.newlabel('ns_fin')
    a.e(f's_cmp_ge_u32 {sItem}, 64'); a.e(f's_cbranch_scc1 {fin}')
    poll_block(a,vFA,sNeed,vF,err,bias=bias)
    dma()
    a.e(f's_branch {top}')
    a.label(fin)
    pdump(a,vT)
    a.e('s_branch L_end')
    a.reset_track()
```

```python
from asmb import *
from layout import *
KARG={'x':0,'mem0':8,'q':16,'k':24,'v':32,'o':40,'w1':64,'w2':72,'w3':80,'w4':88,'out':96,'dbg':104,'ws':112}
def magic(d): return (2**32+d-1)//d
def sdiv(a,q,r,x,d,tmp):
    a.e(f's_mul_hi_u32 {q}, {x}, {hex(magic(d))}')
    a.e(f's_mul_i32 {tmp}, {q}, {d}')
    a.e(f's_sub_u32 {r}, {x}, {tmp}')
def srd(a,b,ptr,nbytes):
    a.e(f's_mov_b32 s{b}, s{ptr}\ns_and_b32 s{b+1}, s{ptr+1}, 0xffff\ns_mov_b32 s{b+2}, {hex(nbytes)}\ns_mov_b32 s{b+3}, 0x20000')

def gen_pre(a,name):
    a.raw(f'.globl {name}\n.p2align 8\n.type {name},@function')
    a.label(name)
    a.e('s_load_dwordx2 s[20:21], s[0:1], 112')
    a.e('v_lshrrev_b32 v1, 6, v0\nv_and_b32 v0, 63, v0')
    a.e('v_readfirstlane_b32 s3, v1')
    a.e('s_lshl_b32 s2, s2, 2\ns_add_u32 s2, s2, s3')
    a.e('v_lshlrev_b32 v2, 4, v0')
    a.e('s_waitcnt lgkmcnt(0)')
    srd(a,4,20,256*MB)
    end=a.newlabel('pre_end')
    def gather(rows,rowbytes):
        for j,r in enumerate(rows):
            a.e(f's_add_u32 s26, s24, {r*rowbytes}')
            a.e(f'buffer_load_ushort v{8+j}, v3, s[8:11], s26 offen')
        a.e('s_waitcnt vmcnt(0)')
        for j in range(4):
            a.e(f'v_lshl_or_b32 v{16+j}, v{9+2*j}, 16, v{8+2*j}')
        a.e('buffer_store_dwordx4 v[16:19], v2, s[4:7], s25 offen')
        a.e(f's_branch {end}')
    t0=0
    for nm,(off,K,N) in WN.items():
        KS=K//16; n=(N//32)*KS
        nxt=a.newlabel('pre_n')
        a.e(f's_cmp_ge_u32 s2, {t0+n}'); a.e(f's_cbranch_scc1 {nxt}')
        a.e(f's_load_dwordx2 s[22:23], s[0:1], {KARG[nm]}')
        a.e(f's_sub_u32 s27, s2, {t0}')
        sdiv(a,'s28','s29','s27',KS,'s30')
        a.e(f's_mul_i32 s24, s29, {16*N*2}\ns_lshl_b32 s30, s28, 6\ns_add_u32 s24, s24, s30')
        a.e(f's_lshl_b32 s25, s27, 10\ns_add_u32 s25, s25, {off}')
        a.e(f'v_lshrrev_b32 v4, 5, v0\nv_and_b32 v5, 31, v0\nv_mul_u32_u24 v4, {4*N*2}, v4\nv_lshl_add_u32 v3, v5, 1, v4')
        a.e('s_waitcnt lgkmcnt(0)')
        srd(a,8,22,K*N*2)
        gather([0,1,2,3,8,9,10,11],N*2)
        a.label(nxt); t0+=n
    n=32*4*80*2
    nxt=a.newlabel('pre_n')
    a.e(f's_cmp_ge_u32 s2, {t0+n}'); a.e(f's_cbranch_scc1 {nxt}')
    a.e(f's_sub_u32 s27, s2, {t0}')
    a.e(f's_lshl_b32 s25, s27, 10\ns_add_u32 s25, s25, {CF}')
    a.e('s_and_b32 s31, s27, 1\ns_lshr_b32 s27, s27, 1')
    sdiv(a,'s28','s29','s27',80,'s30')
    a.e('v_and_b32 v5, 15, v0\nv_lshrrev_b32 v4, 4, v0')
    a.e('v_lshrrev_b32 v6, 1, v4\nv_and_b32 v7, 1, v4')
    lz=a.newlabel('pre_z')
    a.e('s_cmp_ge_u32 s29, 60'); a.e(f's_cbranch_scc1 {lz}')
    sdiv(a,'s32','s33','s29',20,'s30')
    sdiv(a,'s34','s35','s33',10,'s30')
    a.e('s_load_dwordx2 s[22:23], s[0:1], 16\ns_load_dwordx2 s[36:37], s[0:1], 24\ns_load_dwordx2 s[38:39], s[0:1], 32')
    a.e('s_waitcnt lgkmcnt(0)')
    a.e('s_cmp_eq_u32 s32, 1\ns_cselect_b32 s22, s36, s22\ns_cselect_b32 s23, s37, s23')
    a.e('s_cmp_eq_u32 s32, 2\ns_cselect_b32 s22, s38, s22\ns_cselect_b32 s23, s39, s23')
    srd(a,8,22,640*4096*2)
    a.e('s_lshl_b32 s24, s35, 1\ns_add_u32 s24, s24, s31\ns_lshl_b32 s24, s24, 18')
    a.e('s_lshl_b32 s30, s28, 6\ns_add_u32 s24, s24, s30')
    a.e('s_cmp_eq_u32 s32, 2\ns_cselect_b32 s30, 5, 1\ns_cselect_b32 s40, 1, 2')
    a.e('s_lshl_b32 s30, s34, s30\ns_add_u32 s24, s24, s30')
    a.e('v_lshlrev_b32 v3, s40, v5')
    a.e('v_lshl_add_u32 v3, v6, 17, v3\nv_lshl_add_u32 v3, v7, 15, v3')
    gather([0,1,8,9,2,3,10,11],8192)
    a.label(lz)
    a.e('s_load_dwordx2 s[22:23], s[0:1], 40')
    a.e('s_sub_u32 s29, s29, 60\ns_lshr_b32 s32, s29, 1\ns_and_b32 s33, s29, 1')
    a.e('s_lshr_b32 s34, s28, 2\ns_and_b32 s35, s28, 3')
    a.e('s_lshl_b32 s24, s34, 2\ns_lshl_b32 s30, s33, 1\ns_add_u32 s24, s24, s30\ns_add_u32 s24, s24, s31\ns_mul_i32 s24, s24, %d'%(32*1280))
    a.e('s_lshl_b32 s36, s35, 7\ns_lshr_b32 s37, s32, 2\ns_lshl_b32 s37, s37, 6\ns_add_u32 s36, s36, s37\ns_and_b32 s37, s32, 3\ns_add_u32 s36, s36, s37')
    a.e('s_lshl_b32 s37, s35, 5\ns_add_u32 s37, s37, s32\ns_add_u32 s37, s37, 504')
    a.e('s_cmp_lt_u32 s32, 8\ns_cselect_b32 s36, s36, s37\ns_cselect_b32 s40, 3, 2')
    a.e('s_lshl_b32 s36, s36, 1\ns_add_u32 s24, s24, s36')
    a.e('v_lshlrev_b32 v3, s40, v5')
    a.e(f'v_mul_u32_u24 v7, {16*1280}, v7\nv_mul_u32_u24 v6, {8*1280}, v6\nv_add3_u32 v3, v3, v6, v7')
    a.e('s_waitcnt lgkmcnt(0)')
    srd(a,8,22,4096*640*2)
    gather([0,1,4,5,2,3,6,7],1280)
    a.label(nxt); t0+=n
    n=64*20
    nxt=a.newlabel('pre_n')
    a.e(f's_cmp_ge_u32 s2, {t0+n}'); a.e(f's_cbranch_scc1 {nxt}')
    a.e('s_load_dwordx2 s[22:23], s[0:1], 0')
    a.e(f's_sub_u32 s27, s2, {t0}')
    sdiv(a,'s28','s29','s27',20,'s30')
    a.e(f's_mul_i32 s24, s28, {32*1280}\ns_lshl_b32 s30, s29, 6\ns_add_u32 s24, s24, s30')
    a.e('v_lshrrev_b32 v4, 5, v0\nv_and_b32 v5, 31, v0\nv_mul_u32_u24 v3, 1280, v5\nv_lshl_add_u32 v3, v4, 3, v3')
    a.e('s_waitcnt lgkmcnt(0)')
    srd(a,8,22,2048*640*2)
    for i in range(4):
        a.e(f'buffer_load_dwordx2 v[{8+2*i}:{9+2*i}], v3, s[8:11], s24 offen offset:{16*i}')
    a.e(f's_mul_i32 s25, s28, {SEGB}\ns_add_u32 s25, s25, {XIN[0]}')
    a.e('s_lshl_b32 s30, s29, 11\ns_add_u32 s26, s25, s30')
    a.e('s_waitcnt vmcnt(0)')
    a.e('buffer_store_dwordx4 v[8:11], v2, s[4:7], s26 offen\nbuffer_store_dwordx4 v[12:15], v2, s[4:7], s26 offen offset:1024')
    a.e('v_mov_b32 v20, 0\nv_mov_b32 v21, 0')
    for i in range(8):
        a.e(f'v_lshlrev_b32 v16, 16, v{8+i}\nv_and_b32 v17, 0xffff0000, v{8+i}')
        a.e('v_add_f32 v20, v20, v16\nv_fmac_f32 v21, v16, v16\nv_add_f32 v20, v20, v17\nv_fmac_f32 v21, v17, v17')
    a.e('v_mov_b32 v22, v20\nv_mov_b32 v23, v21')
    a.e('v_permlane32_swap_b32 v20, v22\nv_permlane32_swap_b32 v21, v23')
    a.e('v_add_f32 v20, v20, v22\nv_add_f32 v21, v21, v23')
    a.e('v_lshlrev_b32 v5, 3, v5')
    a.e(f's_lshl_b32 s30, s29, 8\ns_add_u32 s26, s25, s30\ns_add_u32 s26, s26, {STAT}')
    a.e('buffer_store_dwordx2 v[20:21], v5, s[4:7], s26 offen')
    a.e(f's_branch {end}')
    a.label(nxt); t0+=n
    n=640
    nxt=a.newlabel('pre_n')
    a.e(f's_cmp_ge_u32 s2, {t0+n}'); a.e(f's_cbranch_scc1 {nxt}')
    a.e(f's_sub_u32 s27, s2, {t0}')
    a.e('s_lshr_b32 s28, s27, 5\ns_cmp_eq_u32 s28, 2\ns_cselect_b32 s28, 64, 0\ns_lshl_b32 s25, s27, 10')
    a.e('v_mov_b32 v8, s28\nv_mov_b32 v9, s28\nv_mov_b32 v10, s28\nv_mov_b32 v11, s28')
    a.e('buffer_store_dwordx4 v[8:11], v2, s[4:7], s25 offen')
    a.e(f's_branch {end}')
    a.label(nxt); t0+=n
    n=2048
    a.e(f's_cmp_ge_u32 s2, {t0+n}'); a.e(f's_cbranch_scc1 {end}')
    a.e(f's_sub_u32 s27, s2, {t0}\ns_lshl_b32 s25, s27, 10\ns_add_u32 s25, s25, {RING}')
    a.e('v_mov_b32 v8, -1\nv_mov_b32 v9, -1\nv_mov_b32 v10, -1\nv_mov_b32 v11, -1')
    a.e('buffer_store_dwordx4 v[8:11], v2, s[4:7], s25 offen')
    t0+=n
    a.label(end)
    a.e('s_endpgm')
    a.reset_track()
    return (t0+3)//4
```

```python
import sys
from common import *
from pre import gen_pre
from ns import gen_ns
NAME='interleave_layers__memory_aug_recurrent_mem_tr__mixer_s_mlp__prompt'
LDS_BYTES=160*1024
def kd(name,vgpr,acc,sgpr=102):
    return f'''.amdhsa_kernel {name}
  .amdhsa_next_free_vgpr {vgpr}
  .amdhsa_next_free_sgpr {sgpr}
  .amdhsa_accum_offset {acc}
  .amdhsa_group_segment_fixed_size 0
  .amdhsa_kernarg_size 120
  .amdhsa_user_sgpr_count 2
  .amdhsa_user_sgpr_kernarg_segment_ptr 1
  .amdhsa_system_sgpr_workgroup_id_x 1
  .amdhsa_float_denorm_mode_32 3
.end_amdhsa_kernel
'''
WSTART={'qkv':0,'wo':48,'att':68,'w1':76,'w2':79,'w3':82,'w4':89}
def gen_main(a,name,roles):
    a.raw(f'.globl {name}\n.p2align 8\n.type {name},@function')
    a.label(name)
    a.e('s_cmp_ge_u32 s2, 256'); a.e('s_cbranch_scc1 L_end')
    a.e('s_load_dwordx2 s[20:21], s[0:1], 112\ns_load_dwordx2 s[22:23], s[0:1], 96\ns_load_dwordx2 s[24:25], s[0:1], 104\ns_load_dwordx2 s[26:27], s[0:1], 8')
    a.e('v_lshrrev_b32 v1, 6, v0\nv_and_b32 v0, 63, v0')
    a.e(f'v_readfirstlane_b32 {sWave}, v1')
    a.e('s_getreg_b32 s41, hwreg(HW_REG_XCC_ID)\ns_and_b32 s41, s41, 7')
    a.e('s_waitcnt lgkmcnt(0)')
    srd(a,4,20,256*MB); srd(a,8,22,2048*640*2); srd(a,12,24,256); srd(a,16,26,8*640*2)
    a.e(f's_mov_b32 {sItem}, 0')
    cl=a.newlabel('claimed'); got=a.newlabel('got')
    a.e(f'v_mov_b32 v4, {LDS_BYTES-16}')
    a.e(f's_cmp_lg_u32 {sWave}, 0'); a.e(f's_cbranch_scc1 {cl}')
    a.e(f's_lshl_b32 s42, s41, 7\ns_add_u32 s42, s42, {CLAIM}')
    a.e('v_mov_b32 v2, 1\nv_mov_b32 v3, 0')
    a.e('s_mov_b64 exec, 1')
    a.e(f'buffer_atomic_add v2, v3, {WS}, s42 offen sc0 sc1')
    a.e('s_waitcnt vmcnt(0)')
    a.e('s_mov_b64 exec, -1')
    a.e('v_readfirstlane_b32 s43, v2')
    a.e('s_lshl_b32 s44, s41, 5\ns_add_u32 s44, s44, s43')
    a.e('s_cmp_lt_u32 s43, 32'); a.e(f's_cbranch_scc1 {got}')
    a.e('v_mov_b32 v2, 1')
    a.e('s_mov_b64 exec, 1')
    a.e(f's_mov_b32 s42, {CLAIM+8*128}')
    a.e(f'buffer_atomic_add v2, v3, {WS}, s42 offen sc0 sc1')
    a.e('s_waitcnt vmcnt(0)')
    a.e('s_mov_b64 exec, -1')
    a.e('v_readfirstlane_b32 s43, v2')
    wait_all_registered(a,2,3)
    a.e('s_mov_b32 s44, 255')
    for x in range(8):
        a.e(f's_min_u32 s45, s{50+x}, 32\ns_sub_u32 s46, 32, s45\ns_add_u32 s45, s45, s43\ns_add_u32 s45, s45, {32*x}')
        a.e('s_cmp_lt_u32 s43, s46\ns_cselect_b32 s44, s45, s44\ns_sub_u32 s43, s43, s46')
    a.label(got)
    a.e('v_mov_b32 v2, s44')
    a.e('ds_write_b32 v4, v2')
    a.e('s_waitcnt lgkmcnt(0)')
    a.label(cl)
    a.e('s_barrier')
    a.e('ds_read_b32 v2, v4')
    a.e('s_waitcnt lgkmcnt(0)')
    a.e(f'v_readfirstlane_b32 {sRole}, v2')
    a.e('s_barrier')
    a.reset_track()
    a.e(f's_cmp_lt_u32 {sRole}, 64'); a.e('s_cbranch_scc1 R_chain')
    a.e(f's_sub_u32 s42, {sRole}, 64\ns_cmp_ge_u32 s42, 96\ns_cselect_b32 {sLayer}, 1, 0\ns_cselect_b32 s43, 96, 0\ns_sub_u32 s42, s42, s43')
    if OPT.get('layers',2)==1:
        a.e(f's_cmp_eq_u32 {sLayer}, 1'); a.e('s_cbranch_scc1 L_end')
    order=ORDER
    for n,(nm,lo,hi,base) in enumerate(order):
        a.e(f's_mov_b32 s43, {base-lo}\ns_cmp_lt_u32 s42, {hi}'); a.e(f's_cbranch_scc1 R_{nm}')
    a.e('s_branch L_end')
    for nm in ('qk','v','wo','att','w1','w2','w3','w4'):
        a.label(f'R_{nm}')
        if nm not in roles: a.e('s_branch L_end'); continue
        a.e('s_add_u32 s42, s42, s43')
        if nm in('qk','v','w1','w2','w3'):
            a.e(f's_lshl_b32 s41, s42, 2\ns_add_u32 s41, s41, {sWave}')
            gen_ns(a,nm)
        elif nm=='att':
            from att import gen_att
            gen_att(a)
        else:
            from ks import gen_ks
            gen_ks(a,nm)
    a.label('R_chain')
    if 'chain' in roles:
        from chain import gen_chain
        gen_chain(a)
    else: a.e('s_branch L_end')
    a.label('L_fail')
    a.e(f's_lshl_b32 s42, {sRole}, 8\ns_or_b32 s42, s42, {sErr}\ns_lshl_b32 s43, {sItem}, 16\ns_or_b32 s42, s42, s43')
    a.e(f's_lshl_b32 s43, {sErr}, 2')
    a.e('s_mov_b64 exec, -1')
    a.e('v_mov_b32 v1, s42\nv_mov_b32 v2, 0')
    a.e(f'buffer_store_dword v1, v2, {DBG}, s43 offen')
    a.label('L_end')
    a.e('s_endpgm')
def wait_all_registered(a,vF,vA,stop_slot=None):
    L=a.newlabel('reg'); D=a.newlabel('regd')
    a.e(f'v_and_b32 v{vA}, 7, v0\nv_lshlrev_b32 v{vA}, 7, v{vA}\nv_add_u32 v{vA}, {CLAIM}, v{vA}')
    a.e(f's_mov_b32 {sCnt}, 0')
    a.label(L)
    a.e(f'buffer_load_dword v{vF}, v{vA}, {WS}, 0 offen sc1')
    a.e('s_waitcnt vmcnt(0)')
    for x in range(8): a.e(f'v_readlane_b32 s{50+x}, v{vF}, {x}')
    if stop_slot:
        a.e(f'v_readlane_b32 s58, v{vF}, {stop_slot}')
        a.e('s_cmp_ge_u32 s58, 32'); a.e(f's_cbranch_scc1 {D}')
    a.e('s_add_u32 s59, s50, s51')
    for x in range(2,8): a.e(f's_add_u32 s59, s59, s{50+x}')
    a.e('s_cmp_ge_u32 s59, 256'); a.e(f's_cbranch_scc1 {D}')
    a.e('s_sleep 2')
    a.e(f's_add_u32 {sCnt}, {sCnt}, 1\ns_cmp_lt_u32 {sCnt}, {POLL_LIMIT}'); a.e(f's_cbranch_scc1 {L}')
    a.e(f's_mov_b32 {sErr}, 15'); a.e('s_branch L_fail')
    a.label(D); a.vm=[]
import common; common.wait_all_registered=wait_all_registered
def build(roles,path):
    a=Asm()
    npre=gen_pre(a,'pre_kernel')
    gen_main(a,NAME+'_kernel',roles)
    hdr=open('cdna_kernels/'+NAME+'.s.ref').read().split('; Override')[0]
    s=hdr+f'; @launch kernel=pre_kernel grid=({npre},1,1) block=(256,1,1) lds=0\n; @launch kernel={NAME}_kernel grid=(256,1,1) block=(256,1,1) lds={LDS_BYTES}\n'
    s+='.amdgcn_target "amdgcn-amd-amdhsa--gfx950"\n.text\n'+a.text()
    s+='.section .rodata,"a"\n.p2align 6\n'+kd('pre_kernel',32,32)+'.p2align 6\n'+kd(NAME+'_kernel',512,256)
    open(path,'w').write(s)
    print('wrote',path,len(s),'bytes')
if __name__=='__main__':
    roles=sys.argv[1].split(',')
    for o in sys.argv[3:]:
        k,v=o.split('='); OPT[k]=int(v)
    OPT['roles']=roles
    build(roles,sys.argv[2])
```

```python
from common import *
SCL=(128**-0.5)*1.4426950408889634
def gen_att(a):
    sH='s41'
    a.e(f's_and_b32 s47, {sWave}, 1\ns_lshr_b32 s48, {sWave}, 1\ns_lshl_b32 {sH}, s42, 1\ns_add_u32 {sH}, {sH}, s47')
    va=VA(1,256)
    vL16=va.get(); vZ=va.get(); vFA=va.get(); vFB=va.get(); vF=va.get(); vKM=va.get(); vL8=va.get(); T=va.get(4,2)
    km=va.get(32,4); vm=va.get(8,4); vF2=va.get()
    bias=va.get(16,4); S=va.get(16,4); Sm=va.get(16,4); P=va.get(12,4)
    o=[va.get(16,4) for _ in range(4)]
    SET=[256,256+96]
    a.e(f'v_lshlrev_b32 v{vL16}, 4, v0\nv_mov_b32 v{vZ}, 0\nv_lshlrev_b32 v{vL8}, 3, v0')
    a.e(f'v_and_b32 v{T}, 7, v0\nv_min_u32 v{T}, 5, v{T}\nv_and_b32 v{T+1}, 1, v{T}\nv_lshrrev_b32 v{T}, 1, v{T}\nv_lshlrev_b32 v{vFA}, {FSH+6}, v{T}\nv_lshl_add_u32 v{vFA}, v{T+1}, {FSH}, v{vFA}')
    lsel(a,'s43',[FLAG(0,ST_QKV),FLAG(1,ST_QKV)]); a.e(f's_lshl_b32 s44, {sH}, {FSH+1}\ns_add_u32 s43, s43, s44\nv_add_u32 v{vFA}, s43, v{vFA}')
    lsel(a,'s43',[FLAG(0,ST_CH),FLAG(1,ST_CH)]); a.e(f's_lshl_b32 s44, {sH}, {FSH}\ns_add_u32 s43, s43, s44')
    a.e(f'v_mov_b32 v{vFB}, s43')
    lsel(a,'s37',[FLAG(0,ST_ATT),FLAG(1,ST_ATT)]); a.e(f's_lshl_b32 s44, {sH}, {FSH}\ns_add_u32 s37, s37, s44')
    lsel(a,'s32',QKV); a.e(f's_lshr_b32 s44, {sH}, 4\ns_lshl_b32 s44, s44, 18\ns_add_u32 s32, s32, s44\ns_lshl_b32 s44, {sH}, 13\ns_add_u32 s32, s32, s44')
    lsel(a,'s36',O); a.e('s_add_u32 s36, s36, s44')
    lsel(a,'s33',KVM); a.e(f's_lshl_b32 s44, {sH}, 12\ns_add_u32 s33, s33, s44')
    a.e(f'v_lshrrev_b32 v{T}, 5, v0\nv_and_b32 v{vKM}, 7, v0\nv_lshlrev_b32 v{vKM}, 4, v{vKM}\nv_lshl_add_u32 v{vKM}, v{T}, 7, v{vKM}')
    a.e(f'v_and_b32 v{T+1}, 31, v0\nv_lshlrev_b32 v{T}, 2, v{T}\nv_sub_u32 v{T}, v{T+1}, v{T}\nv_mov_b32 v{T+1}, {hex(f2u(-1e30))}')
    for i in range(16):
        a.e(f'v_cmp_le_i32 vcc, {8*(i>>2)+(i&3)}, v{T}\nv_cndmask_b32 v{bias+i}, v{T+1}, v{vZ}, vcc')
    a.e(f's_mov_b32 s35, {hex(f2u(SCL))}\ns_mov_b32 {sItem}, s48')
    a.e(f's_mul_i32 s44, s48, {QKVB}\ns_add_u32 s32, s32, s44\ns_mul_i32 s44, s48, {OB}\ns_add_u32 s36, s36, s44\ns_mul_i32 s44, s48, {KVMB}\ns_add_u32 s33, s33, s44\ns_lshl_b32 s44, s48, 2\ns_add_u32 s37, s37, s44')
    wait_init(a,T,T+1)
    q,k,v=256,256+32,256+64
    def bulk(lo=0,hi=24):
        for n in range(lo,hi):
            m,i=n//8,n%8
            if i%4==0: a.e(f's_add_u32 s44, s32, {m*128*KB+(i//4)*4096}')
            a.e(f'buffer_load_dwordx4 {R(q+4*n,4)}, v{vL16}, {WS}, s44 offen offset:{(i%4)*1024} sc1')
        if hi==24: a.e(f's_add_u32 s32, s32, {2*QKVB}')
    a.e(f's_add_u32 s49, {sItem}, 1')
    repoff(a,'s46',sItem)
    poll_block(a,vFA,'s49',vF,6,soff='s46')
    bulk()
    pinit(a)
    top=a.newlabel('att_top'); a.label(top); a.reset_track()
    a.e(f's_cmp_ge_u32 {sItem}, 64'); a.e('s_cbranch_scc1 L_end')
    pt(a,0)
    a.e(f's_add_u32 {sNeed}, {sItem}, 1\ns_add_u32 s49, {sItem}, 3')
    repoff(a,'s46',sItem,2)
    a.e('s_waitcnt vmcnt(8)')
    for ks in range(8):
        a.e(f'v_mfma_f32_32x32x16_bf16 {vr(S,16)}, {R(k+4*ks,4)}, {R(q+4*ks,4)}, {vr(bias,16) if ks==0 else vr(S,16)}')
    m=T
    a.e(f'v_max3_f32 v{m}, v{S}, v{S+1}, v{S+2}')
    for i in range(3,15,2): a.e(f'v_max3_f32 v{m}, v{m}, v{S+i}, v{S+i+1}')
    a.e(f'v_max_f32 v{m}, v{m}, v{S+15}')
    a.e('s_waitcnt vmcnt(0)')
    pt(a,1)
    a.e(f's_mov_b32 s45, {sItem}')
    poll_block(a,vFB,'s45',vF,7,sleep=8)
    poll_block(a,vFB,sNeed,vF,7,sleep=OPT.get('asl',0))
    stamp(a,T+2,vZ,0); pt(a,2)
    for ks in range(8): a.e(f'buffer_load_dwordx4 {vr(km+4*ks,4)}, v{vKM}, {WS}, s33 offen offset:{ks*256} sc1',tag=('km',ks))
    for et in range(4): a.e(f'buffer_load_dwordx2 {vr(vm+2*et,2)}, v{vL8}, {WS}, s33 offen offset:{2048+et*512} sc1',tag='vm')
    a.e(f'buffer_load_dword v{vF2}, v{vFA}, {WS}, s46 offen sc1',tag='fl')
    a.e(f's_add_u32 s33, s33, {2*KVMB}')
    for ks in range(8):
        a.wait_vm(('km',ks))
        a.e(f'v_mfma_f32_32x32x16_bf16 {vr(Sm,16)}, {vr(km+4*ks,4)}, {R(q+4*ks,4)}, {"0" if ks==0 else vr(Sm,16)}')
    pt(a,3)
    a.e(f'v_max3_f32 v{m}, v{m}, v{Sm}, v{Sm+1}\nv_max3_f32 v{m}, v{m}, v{Sm+2}, v{Sm+3}')
    a.e(f'v_mov_b32 v{m+1}, v{m}\nv_permlane32_swap_b32 v{m}, v{m+1}\nv_max_f32 v{m}, v{m}, v{m+1}\nv_mul_f32 v{m}, s35, v{m}')
    vals=[S+i for i in range(16)]+[Sm+i for i in range(4)]
    for x in vals: a.e(f'v_fma_f32 v{x}, v{x}, s35, -v{m}')
    for x in vals: a.e(f'v_exp_f32 v{x}, v{x}')
    cvt_pack(a,P,S,16); cvt_pack(a,P+8,Sm,4)
    a.wait_vm('vm')
    adds=[f'v_add_f32 v{vals[i]}, v{vals[i]}, v{vals[i+10]}' for i in range(10)]+[f'v_add_f32 v{vals[i]}, v{vals[i]}, v{vals[i+5]}' for i in range(5)]
    adds+=[f'v_add_f32 v{S}, v{S}, v{S+1}',f'v_add_f32 v{S+2}, v{S+2}, v{S+3}',f'v_add_f32 v{S}, v{S}, v{S+4}',f'v_add_f32 v{m}, v{S}, v{S+2}']
    adds+=[f'v_mov_b32 v{m+1}, v{m}',f'v_permlane32_swap_b32 v{m}, v{m+1}',f'v_add_f32 v{m}, v{m}, v{m+1}',f'v_rcp_f32 v{m}, v{m}']
    def fill(n):
        for _ in range(n):
            if adds: a.e(adds.pop(0))
    def epi(et):
        r=[]
        for h in range(2):
            r+=[f'v_mul_f32 v{o[et]+i}, v{o[et]+i}, v{m}' for i in range(8*h,8*h+8)]
            r+=[f'v_cvt_pk_bf16_f32 v{km+8*et+i}, v{o[et]+2*i}, v{o[et]+2*i+1}' for i in range(4*h,4*h+4)]
            ks=2*et+h
            r.append(f'buffer_store_dwordx4 {vr(km+8*et+4*h,4)}, v{vL16}, {WS}, {"s36" if ks<4 else "s45"} offen offset:{(ks%4)*1024} sc1')
        return r
    a.e('s_add_u32 s45, s36, 4096')
    for et in range(4):
        a.e(f'v_mfma_f32_32x32x8_bf16 {vr(o[et],16)}, {vr(vm+2*et,2)}, {vr(P+8,2)}, 0')
        fill(5)
    for et in range(4):
        for kt in range(2):
            a.e(f'v_mfma_f32_32x32x16_bf16 {vr(o[et],16)}, {R(v+8*et+4*kt,4)}, {vr(P+4*kt,4)}, {vr(o[et],16)}')
            fill(6)
        if et>=1: adds+=epi(et-1)
    adds+=epi(3)
    fill(999)
    a.e(f's_add_u32 s36, s36, {2*OB}')
    stamp(a,T,vZ,1); pt(a,4)
    a.e(f's_add_u32 {sItem}, {sItem}, 2')
    a.wait_vm('fl')
    flag_check(a,vF2,'s49')
    blk=a.newlabel('att_b'); nx=a.newlabel('att_n')
    a.e(f's_cbranch_scc0 {blk}')
    NB=OPT.get('nb',8)
    bulk(0,NB)
    a.e(f's_waitcnt vmcnt({NB})')
    pt(a,18,2)
    publish(a,T,vZ,'s37',sNeed,WS)
    bulk(NB,24)
    a.e(f's_branch {nx}')
    a.label(blk)
    a.e('s_waitcnt vmcnt(0)')
    pt(a,18,2)
    publish(a,T,vZ,'s37',sNeed,WS)
    a.e(f's_cmp_ge_u32 {sItem}, 64'); a.e('s_cbranch_scc1 att_fin')
    poll_block(a,vFA,'s49',vF,6,soff='s46')
    bulk()
    a.label(nx)
    pt(a,5,2); pacc(a,6)
    a.e(f's_branch {top}')
    a.label('att_fin')
    pdump(a,T)
    a.e('s_branch L_end')
```

```python
from common import *
from wload import *
import common
LWB=36864; MEMB=147456; QB=MEMB+10240; KBF=QB+2048; SX=KBF+2048
SCL=(128**-0.5)*1.4426950408889634
def fx(M,j2,ks): return M*20+j2*10+ks
def fz(t,ks): return 60+2*t+ks
NSL=7
XSEQ=[(M,j,ks) for ks in range(10) for M,j in ((0,0),(0,1),(2,0),(1,0),(1,1),(2,1))]
XF=[fx(*x) for x in XSEQ]
ZORD=[8,9,0,1,2,3,4,5,6,7]
ZSEQ=[(t,ks) for t in ZORD for ks in range(2)]
ZF=[fz(*x) for x in ZSEQ]
WIN_A=[(XF[0],5),(XF[1],6),(XF[6],2),(XF[7],3),(XF[9],4)]
PRE_L=[(XF[2],0),(XF[5],1)]
LIDX=[6*ks+o for ks in range(1,9) for o in (2,5)]
LDSF=[f for f,_ in PRE_L]+[XF[i] for i in LIDX]
assert LDSF==[fx(2,j,ks) for ks in range(9) for j in range(2)]
WIN_B=[XF[48]]
WIN_C=[(ZF[0],0),(ZF[1],6),(ZF[2],1),(ZF[3],5),(ZF[18],2),(ZF[19],3)]
RES=[f for f in range(80) if f not in [x for x,_ in WIN_A+WIN_C]+WIN_B+LDSF]
assert len(RES)==50 and len(LDSF)==18
STRM=[x for x,_ in WIN_A]+WIN_B+[x for x,_ in WIN_C]
assert len(STRM)==12
POOL=56
def slot(i): return POOL+8*i
RLOC={}
for i,f in enumerate(RES): RLOC[f]= 256+8*i if i<32 else 112+8*(i-32)
sH,sCF,sKV,sKVM,sPMs,sPLs,sMw,sMz,sFo='s41','s42','s43','s44','s45','s46','s47','s49','s37'
sPMr,sPLr='s32','s33'
def gen_chain(a):
    a.e(f's_lshr_b32 {sLayer}, {sRole}, 5\ns_and_b32 {sH}, {sRole}, 31')
    if OPT.get('layers',2)==1:
        a.e(f's_cmp_eq_u32 {sLayer}, 1'); a.e('s_cbranch_scc1 L_end')
    chain_load(a)
    wait_init(a,2,3,True)
    stamp(a,2,None,6)
    nl=a.newlabel('ch_nl')
    a.e(f's_add_u32 s60, {sRole}, {sWave}\ns_cmp_lg_u32 s60, 0'); a.e(f's_cbranch_scc1 {nl}')
    a.e(f's_mov_b32 s60, {FLAG(0,ST_PX)}')
    publish(a,2,None,'s60',1,WS)
    a.label(nl)
    common.wait_all_registered(a,2,3,stop_slot=sLayer)
    a.e('s_cmp_ge_u32 s58, 32\ns_cselect_b32 s63, 1, 0')
    if OPT.get('slow',0): a.e('s_mov_b32 s63, 0')
    a.e(f's_lshl_b32 s60, {sWave}, 1\ns_add_u32 s60, s60, s63')
    for w in range(4):
        for fast in (0,1):
            a.e(f's_cmp_eq_u32 s60, {2*w+fast}'); a.e(f's_cbranch_scc1 CH_{w}_{fast}')
    a.e('s_branch L_end')
    for w in range(4):
        for fast in (0,1):
            a.label(f'CH_{w}_{fast}'); a.reset_track()
            chain_wave(a,w,fast)

def chain_load(a):
    a.e('s_load_dwordx4 s[64:67], s[0:1], 16\ns_load_dwordx4 s[68:71], s[0:1], 32')
    lsel(a,sCF,SF); a.e(f's_lshl_b32 s61, {sH}, 2\ns_add_u32 s61, s61, {sWave}\ns_mul_i32 s62, s61, {24*KB}\ns_add_u32 {sCF}, {sCF}, s62')
    a.e(f's_lshl_b32 s61, {sH}, 8\ns_lshl_b32 s60, {sWave}, 17\ns_add_u32 s61, s61, s60')
    a.e(f's_mul_i32 s62, {sH}, {128*1280}\ns_lshl_b32 s63, {sWave}, 8\ns_add_u32 s63, s63, s62\ns_lshl_b32 s60, {sWave}, 6\ns_add_u32 s62, s62, s60\ns_add_u32 s62, s62, 1024')
    a.e(f's_mul_i32 s22, {sWave}, {LWB}\ns_mov_b32 s20, 0x05040100\ns_mov_b32 s21, 0x07060302')
    vSX,vSZ,vSM,vRQ,vRV,vRM,vRL,vW,X=2,3,4,5,6,7,8,9,10
    vRQ1,vRV1=80,81
    a.e('v_lshlrev_b32 v1, 4, v0')
    a.e(f'v_lshrrev_b32 v{X}, 2, v0\nv_and_b32 v{X+1}, 3, v0\nv_mul_u32_u24 v{vSZ}, 1280, v{X}\nv_lshl_add_u32 v{vSZ}, v{X+1}, 4, v{vSZ}')
    a.e(f'v_lshrrev_b32 v{X}, 3, v0\nv_mul_u32_u24 v{vSM}, 1280, v{X}\nv_and_b32 v{X}, 7, v0\nv_lshl_add_u32 v{vSM}, v{X}, 4, v{vSM}')
    a.e(f'v_and_b32 v{X}, 15, v0\nv_bfe_u32 v{X+2}, v0, 4, 1\nv_lshrrev_b32 v{X+3}, 5, v0')
    a.e(f'v_lshrrev_b32 v{vSX}, 4, v0\nv_lshlrev_b32 v{vSX}, 13, v{vSX}\nv_lshl_add_u32 v{vSX}, v{X}, 4, v{vSX}')
    a.e(f'v_mul_u32_u24 v{vRQ}, {LWB}, v{X+3}\nv_lshl_add_u32 v{vRQ}, v{X+2}, 10, v{vRQ}\ns_lshl_b32 s60, {sWave}, 6\nv_add_u32 v{vRQ}, s60, v{vRQ}')
    a.e(f'v_lshl_add_u32 v{vRV}, v{X+1}, 3, v{vRQ}\nv_bfe_u32 v{X+4}, v0, 2, 1\nv_lshl_add_u32 v{vRV}, v{X+4}, 8, v{vRV}\nv_bfe_u32 v{X+4}, v0, 3, 1\nv_lshl_add_u32 v{vRV}, v{X+4}, 11, v{vRV}')
    a.e(f'v_lshl_add_u32 v{vRQ}, v{X}, 2, v{vRQ}\nv_add_u32 v{vRQ1}, {2*LWB}, v{vRQ}\nv_add_u32 v{vRV1}, {2*LWB}, v{vRV}')
    a.e(f'v_lshlrev_b32 v{vRL}, 10, v{X+2}\nv_lshl_add_u32 v{vRL}, v{X+3}, 9, v{vRL}\nv_lshl_add_u32 v{vRL}, v{X}, 2, v{vRL}\nv_lshlrev_b32 v{vRM}, 1, v{vRL}\nv_add_u32 v{vRL}, s22, v{vRL}\nv_add_u32 v{vRM}, s22, v{vRM}')
    a.e(f'v_add_u32 v{vW}, s22, v1')
    a.e('s_waitcnt lgkmcnt(0)')
    for i,b in enumerate((72,76,80,84)): srd(a,b,64+2*i,640*4096*2)
    blocks=[('x',M,ks) for ks in range(10) for M in range(2)]+[('m',ks,hi,sg) for ks in range(2) for hi in range(2) for sg in range(2)]+[('l',0),('l',1),('x',2,9)]+[('x',2,ks) for ks in range(9)]
    if OPT.get('zfirst',1): blocks=blocks[20:30]+blocks[:20]+blocks[30:]
    assert len(blocks)==40
    def sl(b): return ((b-31)%9)*4096
    def issue(b):
        k=blocks[b]
        for q in range(4):
            if k[0]=='x': sd,vs,base,off=72+4*k[1],vSX,'s61',(64*k[2]+4*q)*8192
            elif k[0]=='m': sd,vs,base,off=84,vSM,'s63',(64*k[1]+32*k[2]+8*q)*1280+128*k[3]
            else: sd,vs,base,off=84,vSZ,'s62',(64*k[1]+16*q)*1280
            a.e(f's_add_u32 s23, s22, {sl(b)+q*1024}\ns_mov_b32 m0, s23\ns_add_u32 s23, {base}, {off}')
            a.e(f'buffer_load_dwordx4 v{vs}, s[{sd}:{sd+3}], s23 offen{" nt" if OPT.get("lnt",1) else ""} lds',tag=('d',b))
    RAW=[16,32]; OUTB=[48,64]
    def put(f,hi,src):
        if f in RLOC:
            if RLOC[f]>=256:
                for i in range(4): a.e(f'v_accvgpr_write_b32 {R(RLOC[f]+4*hi+i)}, v{src+i}')
        elif f in STRM:
            a.e(f's_add_u32 s23, {sCF}, {STRM.index(f)*2048+hi*1024}')
            a.e(f'buffer_store_dwordx4 {vr(src,4)}, v1, {WS}, s23 offen')
    def dst(f,hi,tmp): return RLOC[f]+4*hi if (f in RLOC and RLOC[f]<256) else tmp
    a.reset_track()
    for b in range(9): issue(b)
    OX=[0,1,8,9,2,3,10,11]; OZ=[0,1,4,5,2,3,6,7]
    wb=None
    for b,k in enumerate(blocks):
        a.wait_vm(('d',b))
        a.e('s_barrier')
        if b>=1 and b+8<40: issue(b+8)
        if wb: wb(); wb=None
        raw=RAW[b%2]; ob=OUTB[b%2]
        if k[0]=='x' and k[1]==2:
            for j in range(2):
                f=fx(2,j,k[2])
                for hi in range(2):
                    for q in range(2):
                        d=R(RLOC[f]+4*hi+2*q,2) if f in RLOC else vr(raw+8*j+4*hi+2*q,2)
                        a.e(f'ds_read_b64_tr_b16 {d}, v{vRV1 if hi else vRV} offset:{sl(b)+q*512+j*32}')
            a.wait_lg()
            if fx(2,0,k[2]) in LDSF:
                assert LDSF.index(fx(2,0,k[2]))*2048==sl(b)
                def mk(raw,o):
                    def f():
                        for i in range(4): a.e(f'ds_write_b128 v{vW}, {vr(raw+4*i,4)} offset:{o+i*1024}')
                    return f
                wb=mk(raw,sl(b))
        elif k[0]=='m':
            for jl in range(8): a.e(f'ds_read_b64 {vr(raw+2*jl,2)}, v{vRM} offset:{sl(b)+OZ[jl]*128}')
            a.wait_lg()
            for t in range(4):
                f=fz(4*k[3]+t,k[1]); d=dst(f,k[2],ob+4*t)
                for i in range(4): a.e(f'v_perm_b32 v{d+i}, v{raw+4*i+2+t//2}, v{raw+4*i+t//2}, s{20+t%2}')
                put(f,k[2],d)
        else:
            vr_,O=(vRQ,OX) if k[0]=='x' else (vRL,OZ)
            for hi in range(2):
                for jl in range(8):
                    if k[0]=='x': a.e(f'ds_read_b32 v{raw+8*hi+jl}, v{vRQ1 if hi else vRQ} offset:{sl(b)+O[jl]*256}')
                    else: a.e(f'ds_read_b32 v{raw+8*hi+jl}, v{vr_} offset:{sl(b)+hi*2048+O[jl]*64}')
                if hi==0: a.e('s_waitcnt lgkmcnt(4)')
            a.wait_lg()
            for j in range(2):
                f=fx(k[1],j,k[2]) if k[0]=='x' else fz(8+j,k[1])
                for hi in range(2):
                    d=dst(f,hi,ob+8*j+4*hi)
                    for i in range(4): a.e(f'v_perm_b32 v{d+i}, v{raw+8*hi+2*i+1}, v{raw+8*hi+2*i}, s{20+j}')
                    put(f,hi,d)
    a.e('s_barrier'); wb()
    a.e('s_waitcnt vmcnt(0) lgkmcnt(0)'); a.reset_track()

def chain_wave(a,w,fast):
    RS='' if fast else ' sc1'
    PW=OPT.get('pw',3)
    FW=3
    va=VA(0,POOL)
    vAR=va.get()
    vLM=va.get()
    vIdx=va.get(); vLW=va.get(); vQW=va.get(); vQR=va.get(); vKR=va.get(); vOW=va.get()
    vVX=va.get(); vPM=va.get(); vPL=va.get(); vRO=va.get(); vFA=va.get(); vVM=va.get()
    T=va.get(6,2); selr=va.get(4,4)
    ar=va.get(8,4); acc=va.get(24,4)
    assert acc==ar+8 and acc+24==POOL
    X=acc
    vF=T+1
    c,g=T,T+1
    a.e(f'v_and_b32 v{c}, 15, v0\nv_lshrrev_b32 v{g}, 4, v0')
    a.e(f'v_bfe_u32 v{T+2}, v0, 1, 1\nv_mul_u32_u24 v{vIdx}, 0xaaaa, v{T+2}\nv_add_u32 v{vIdx}, 0x4444, v{vIdx}')
    a.e(f'v_add_u32 v{vLW}, {w*LWB}, v1\nv_add_u32 v{vLM}, {MEMB}, v1')
    a.e(f'v_lshrrev_b32 v{T+3}, 3, v{c}\nv_lshlrev_b32 v{vQW}, 8, v{T+3}\nv_lshl_add_u32 v{vQW}, v{T+2}, 7, v{vQW}\nv_lshl_add_u32 v{vQW}, v{g}, 5, v{vQW}')
    a.e(f'v_and_b32 v{T+4}, 1, v0\nv_lshl_add_u32 v{vQW}, v{T+4}, 2, v{vQW}\nv_bfe_u32 v{T+5}, v0, 2, 1\nv_lshl_add_u32 v{vQW}, v{T+5}, 3, v{vQW}\nv_add_u32 v{vQW}, {QB+w*512}, v{vQW}')
    a.e(f'v_and_b32 v{vQR}, 7, v0\nv_lshlrev_b32 v{vQR}, 4, v{vQR}\nv_lshl_add_u32 v{vQR}, v{g}, 7, v{vQR}\nv_add_u32 v{vQR}, {MEMB}, v{vQR}')
    SXO=0; QO=QB-MEMB
    if w<2:
        a.e(f'v_and_b32 v{vKR}, 7, v0\nv_lshl_add_u32 v{vKR}, v{T+3}, 4, v{vKR}\nv_add_u32 v{vKR}, {8*w}, v{vKR}\nv_lshlrev_b32 v{vKR}, 4, v{vKR}\nv_lshl_add_u32 v{vKR}, v{g}, 9, v{vKR}')
    else:
        a.e(f'v_lshrrev_b32 v{vKR}, 2, v{c}\nv_lshl_add_u32 v{vKR}, v{vKR}, 1, v{T+4}\nv_lshlrev_b32 v{vKR}, 4, v{vKR}\nv_lshl_add_u32 v{vKR}, v{g}, 7, v{vKR}\nv_add_u32 v{vKR}, {KBF}, v{vKR}')
    a.e(f'v_bfe_u32 v{vOW}, v0, 1, 2\nv_lshl_add_u32 v{vOW}, v{vOW}, 2, v{T+4}\nv_bfe_u32 v{vVX}, v0, 4, 1\nv_lshl_add_u32 v{vOW}, v{vVX}, 1, v{vOW}')
    a.e(f'v_lshrrev_b32 v{vVM}, 5, v0\nv_lshl_add_u32 v{vOW}, v{vVM}, 4, v{vOW}\nv_lshlrev_b32 v{vOW}, 4, v{vOW}\nv_add_u32 v{vOW}, {QB+((w>>1)*64+2*(w&1)*16)*16}, v{vOW}')
    a.e(f'v_lshlrev_b32 v{vVM}, 8, v{vVM}\nv_lshl_add_u32 v{vVM}, v{c}, 3, v{vVM}\nv_lshl_add_u32 v{vVM}, v{vVX}, 2, v{vVM}\nv_add_u32 v{vVM}, {SX+w*512}, v{vVM}')
    a.e(f'v_lshlrev_b32 v{vVX}, 4, v{c}\nv_lshl_add_u32 v{vVX}, v{g}, 9, v{vVX}\nv_add_u32 v{vVX}, {128*KB+w*2048}, v{vVX}')
    a.e(f'v_lshlrev_b32 v{vPM}, 13, v{g}\nv_lshl_add_u32 v{vPM}, v{c}, 4, v{vPM}\nv_add_u32 v{vPM}, {w*65536}, v{vPM}')
    a.e(f'v_lshrrev_b32 v{vPL}, 5, v0\nv_lshlrev_b32 v{vPL}, 13, v{vPL}\nv_and_b32 v{X}, 31, v0\nv_lshl_add_u32 v{vPL}, v{X}, 3, v{vPL}\nv_add_u32 v{vPL}, {w*16384}, v{vPL}')
    if w==0:
        a.e(f'v_lshlrev_b32 v{vRO}, 3, v0\ns_and_b32 s60, {sH}, 1\ns_lshl_b32 s60, s60, 6\nv_xor_b32 v{vRO}, s60, v{vRO}\ns_lshl_b32 s60, {sH}, 8\nv_add_u32 v{vRO}, s60, v{vRO}')
    if w==1:
        a.e(f'v_and_b32 v{vRO}, 7, v0\nv_lshlrev_b32 v{vRO}, 3, v{vRO}\nv_lshl_add_u32 v{vRO}, v{g}, 7, v{vRO}\ns_bfe_u32 s60, {sH}, 0x10001\ns_lshl_b32 s60, s60, 6\nv_add_u32 v{vRO}, s60, v{vRO}')
        a.e(f'v_lshlrev_b32 v{X}, 6, v{T+3}\nv_xor_b32 v{vRO}, v{X}, v{vRO}\nv_lshl_add_u32 v{vRO}, v{T+3}, 8, v{vRO}')
        a.e(f's_lshr_b32 s60, {sH}, 2\ns_lshl_b32 s60, s60, 10\ns_and_b32 s61, {sH}, 1\ns_lshl_b32 s61, s61, 9\ns_add_u32 s60, s60, s61\ns_add_u32 s60, s60, 8192\nv_add_u32 v{vRO}, s60, v{vRO}')
    if w<2:
        for i in range(4):
            a.e(f'v_mov_b32 v{selr+i}, 0\nv_cmp_eq_u32 vcc, {2*i}, v{c}\nv_mov_b32 v{X}, 0x3f80\nv_cndmask_b32 v{selr+i}, v{selr+i}, v{X}, vcc')
            a.e(f'v_cmp_eq_u32 vcc, {2*i+1}, v{c}\nv_mov_b32 v{X}, 0x3f800000\nv_cndmask_b32 v{selr+i}, v{selr+i}, v{X}, vcc')
    lsel(a,'s60',[FLAG(0,ST_QKV),FLAG(1,ST_QKV)],64<<FSH)
    a.e(f's_lshl_b32 s61, {sH}, {FSH+1}\ns_add_u32 s60, s60, s61')
    a.e(f'v_lshlrev_b32 v{vFA}, {FSH}, v{T+4}\nv_lshl_add_u32 v{vFA}, v{T+2}, {FSH+6}, v{vFA}\nv_add_u32 v{vFA}, s60, v{vFA}')
    lsel(a,sFo,[FLAG(0,ST_CH),FLAG(1,ST_CH)]); a.e(f's_lshl_b32 s61, {sH}, {FSH}\ns_add_u32 {sFo}, {sFo}, s61')
    lsel(a,sKV,QKV,128*KB); a.e(f's_lshr_b32 s61, {sH}, 4\ns_lshl_b32 s61, s61, 18\ns_add_u32 {sKV}, {sKV}, s61\ns_lshl_b32 s61, {sH}, 13\ns_add_u32 {sKV}, {sKV}, s61')
    lsel(a,sKVM,KVM,-MEMB); a.e(f's_lshl_b32 s61, {sH}, 12\ns_add_u32 {sKVM}, {sKVM}, s61')
    a.e(f's_sub_u32 {sCF}, {sCF}, {MEMB}')
    if OPT.get('fakew',0): a.e(f's_sub_u32 {sCF}, {sCF}, {(w&1)*24*KB}')
    lsel(a,sPMs,[PM(0),PM(1)]); a.e(f's_lshl_b32 s61, {sH}, 13\ns_add_u32 {sPMr}, {sPMs}, s61\ns_sub_u32 {sPMr}, {sPMr}, {MEMB}\ns_lshl_b32 s61, {sH}, 8\ns_add_u32 {sPMs}, {sPMs}, s61')
    lsel(a,sPLs,[PL(0),PL(1)]); a.e(f's_and_b32 s61, {sH}, 7\ns_lshl_b32 s61, s61, 13\ns_add_u32 {sPLr}, {sPLs}, s61\ns_sub_u32 {sPLr}, {sPLr}, {MEMB}')
    a.e(f's_lshl_b32 s61, {sH}, 8\ns_add_u32 {sPLs}, {sPLs}, s61')
    a.e(f's_mov_b32 s24, s4\ns_mov_b32 s25, s5\ns_mov_b32 s27, 0x20000\ns_cmp_lt_u32 {sH}, 8\ns_cselect_b32 s26, s6, 0')
    if w>=2: a.e('s_mov_b32 s26, 0')
    a.e('s_mov_b32 s22, 0x55555555\ns_mov_b32 s23, 0x55555555')
    lsel(a,'s34',[MEMR(0),MEMR(1)])
    a.e(f's_mov_b32 s35, {hex(f2u(SCL))}')
    where={}; halves={}
    def sload_ops(f,si,tag):
        def mk(h):
            def go():
                a.e(f's_add_u32 s60, {sCF}, {STRM.index(f)*2048}')
                a.e(f'buffer_load_dwordx4 {vr(slot(si)+4*h,4)}, v{vLM}, {WS}, s60 offen offset:{1024*h}',tag=tag)
                where[f]=(slot(si),'vm',tag); halves[f]=h
            return go
        return [mk(0),mk(1)]
    def sload(f,si,tag):
        for g_ in sload_ops(f,si,tag): g_()
    def lload_ops(f,si):
        o=LDSF.index(f)*2048
        def mk(h):
            def go():
                a.e(f'ds_read_b128 {vr(slot(si)+4*h,4)}, v{vLW} offset:{o+1024*h}',tag=('w',f))
                where[f]=(slot(si),'lg',('w',f)); halves[f]=h
            return go
        return [mk(0),mk(1)]
    def smf(d,A,f):
        if f in RLOC: B=R(RLOC[f],8)
        else:
            r,kind,tag=where[f]; assert halves[f]==1
            (a.wait_vm if kind=='vm' else a.wait_lg)(tag)
            B=vr(r,8)
        a.e(f'v_smfmac_f32_16x16x64_bf16 {vr(d,4)}, {vr(A,4)}, {B}, v{vIdx}')
    def winA():
        for f,si in WIN_A: sload(f,si,'A')
    def preL():
        for f,si in PRE_L:
            for g_ in lload_ops(f,si): g_()
    def kvflag():
        ok=a.newlabel('ch_ok')
        a.e(f's_add_u32 {sNeed}, {sItem}, 1')
        a.e('s_cmp_lg_u32 s21, 0'); a.e(f's_cbranch_scc1 {ok}')
        repoff(a,'s60',sItem)
        poll_block(a,vFA,sNeed,vF,8,soff='s60')
        a.label(ok)
    def zero(b,n):
        for i in range(0,n,2): a.e(f'v_mov_b64 {vr(b+i,2)}, 0')
    a.e(f's_mov_b32 {sItem}, 0\ns_mov_b32 s66, {sPMr}\ns_mov_b32 s67, {sPLr}\ns_mov_b32 s64, {sPMs}\ns_mov_b32 s65, {sPLs}\ns_add_u32 s63, s64, 0x8000\ns_mov_b32 {sMz}, s34')
    winA(); a.wait_vm(); preL()
    if w>=2:
        a.e(f'v_lshrrev_b32 v{T+3}, 3, v0\nv_mul_u32_u24 v{T+3}, 1280, v{T+3}\nv_and_b32 v{ar}, 7, v0\nv_and_b32 v{ar+1}, 1, v{g}\nv_lshlrev_b32 v{ar+1}, 2, v{ar+1}\nv_xor_b32 v{ar}, v{ar}, v{ar+1}\nv_lshl_add_u32 v{T+3}, v{ar}, 4, v{T+3}')
        for i in range(5): a.e(f'buffer_load_dwordx4 {vr(acc+4*i,4)}, v{T+3}, {MEM0}, 0 offen offset:{(5*(w-2)+i)*128}')
        a.wait_vm()
        for i in range(5): a.e(f'ds_write_b128 v{vLM}, {vr(acc+4*i,4)} offset:{(5*(w-2)+i)*1024}')
    a.e(f'v_lshl_add_u32 v{ar}, v{g}, 1, v{T+2}\nv_lshlrev_b32 v{ar}, 4, v{ar}\nv_lshl_add_u32 v{ar}, v{T+4}, 7, v{ar}\nv_lshlrev_b32 v{ar+1}, 6, v{T+5}\nv_xor_b32 v{ar}, v{ar}, v{ar+1}')
    a.e(f'v_bfe_u32 v{ar+1}, v0, 2, 2\nv_lshl_add_u32 v{ar}, v{ar+1}, 8, v{ar}\nv_add_u32 v{vAR}, {MEMB}, v{ar}')
    a.e('s_mov_b32 s21, 0\ns_mov_b32 s20, 0')
    if w==FW: kvflag()
    pinit(a)
    top=a.newlabel('ch_top')
    a.label(top)
    zero(acc,24)
    a.e('s_waitcnt lgkmcnt(0)'); a.reset_track()
    a.e('s_barrier')
    stamp(a,T,None,0); pt(a,0)
    def ard(ks): a.e(f'ds_read_b128 {vr(ar+4*(ks%2),4)}, v{vAR} offset:{ks*1024}',tag=('a',ks))
    KORD=list(range(10)) if (w<2 or not OPT.get('asym',0)) else [0,2,3,4,5,1,6,7,8,9]
    MJ=((0,0),(0,1),(2,0),(1,0),(1,1),(2,1))
    SEQ=[(M,j,ks) for ks in KORD for M,j in MJ]
    def ard(p): a.e(f'ds_read_b128 {vr(ar+4*(p%2),4)}, v{vAR} offset:{KORD[p]*1024}',tag=('a',p))
    ard(0); ard(1)
    dq=[]; vq=[]
    lq=[fx(*x) for x in SEQ[6:] if fx(*x) in LDSF]
    Aslot={si:f for f,si in WIN_A}
    lops=[o for si in (2,3,4) for o in sload_ops(Aslot[si],si,'A2')]
    cq=[]
    def kx(k2): return lambda: a.e(f'buffer_load_dwordx4 {vr(slot(2)+4*k2,4)}, v{vKR}, {WS}, {sKV if k2<2 else "s61"} offen offset:{(k2%2)*2048} sc1 nt',tag='kx')
    def vx(j): return lambda: a.e(f'buffer_load_dwordx4 {vr(slot(4)+4*j,4)}, v{vVX}, {WS}, {sKV} offen offset:{j*256} sc1 nt',tag='vx')
    def rs(sb,off,sd=WS): return lambda: a.e(f'buffer_store_dwordx4 {vr(T+2,4)}, v{vLM}, {sd}, {sb} offen offset:{off}{RS}',tag='rs')
    def rsm():
        a.e('s_mov_b32 exec_hi, 0')
        a.e(f'buffer_store_dwordx2 {vr(T+2,2)}, v{vRO}, {WS if w==0 else WST}, {sMz} offen{RS}',tag='rs')
        a.e('s_mov_b64 exec, -1')
    def pubflag():
        publish(a,T,None,sFo,sItem,WS)
    a.e(f's_add_u32 s61, {sKV}, 4096')
    if w<2: a.e(f'v_mov_b64 {vr(T+2,2)}, -1')
    lastv=-9
    Cslot={si:f for f,si in WIN_C}
    for i,(M,j,ks) in enumerate(SEQ):
        if i==30: pt(a,1)
        if i==48: pt(a,2)
        if i%6==0: a.wait_lg(('a',i//6))
        f=fx(M,j,ks)
        si=None if f in RLOC else (where[f][0]-POOL)//8
        smf(acc+8*M+4*j,ar+4*((i//6)%2),f)
        if i%6==5 and i//6+2<10: dq.insert(0,(lambda k: (lambda: ard(k)))(i//6+2))
        if si in (0,1,5):
            if lq: dq+=lload_ops(lq.pop(0),si)
            else: cq+=sload_ops(Cslot[si],si,('C',si))
        if i==0 and KORD[1]!=1: vq+=lops
        if i==1:
            vq+=sload_ops(WIN_B[0],6,'B0')
            if w==PW and OPT.get('fpos',1)==2: vq.append(pubflag)
        if i==max(SEQ.index((1,0,1)),OPT.get('kx0',9)):
            if w<2: vq+=[kx(k) for k in range(4)]
            vq+=[vx(0),vx(1)]
            if w==FW:
                def fl_():
                    repoff(a,'s60',sItem,1)
                    a.e(f'buffer_load_dword v{vRO}, v{vFA}, {WS}, s60 offen sc1',tag='fl')
                vq.append(fl_)
            if w<2: vq+=[rsm]
        if f==WIN_B[0]: cq+=sload_ops(Cslot[6],6,('C',6))
        if dq: dq.pop(0)()
        if i-lastv>=OPT.get('vgap',4) or (i-lastv>=2 and i<8) or (i-lastv>=OPT.get('pgap',3) and w>=2):
            if vq: vq.pop(0)(); lastv=i
            elif cq: cq.pop(0)(); lastv=i
    assert not dq and not vq, (len(dq),len(vq))
    if not OPT.get('fakekv',0): a.e(f's_add_u32 {sKV}, {sKV}, {QKVB}')
    def cfill(n):
        for _ in range(n):
            if cq: cq.pop(0)()
    stamp(a,T,None,1); pt(a,3)
    for i in range(4): a.e(f'v_pk_add_f32 {vr(acc+4*i,2)}, {vr(acc+4*i,2)}, {vr(acc+4*i+2,2)}')
    for M in range(2):
        for rho in range(2):
            a.e(f'v_cvt_pk_bf16_f32 v{T+2*M+rho}, v{acc+8*M+rho}, v{acc+8*M+4+rho}')
    for M in range(2):
        for rho in range(2):
            a.e(f'ds_write_b32 v{vQW}, v{T+2*M+rho} offset:{M*2048+rho*16}')
    vm=[acc+16,acc+20]
    for j in range(2):
        a.e(f'v_pk_add_f32 {vr(vm[j],2)}, {vr(vm[j],2)}, {vr(vm[j]+2,2)}')
    for j in range(2):
        a.e(f'v_cvt_pk_bf16_f32 v{vm[j]}, v{vm[j]}, v{vm[j]+1}\nv_mov_b32 v{vm[j]+1}, 0')
    a.e(f'ds_write_b32 v{vVM}, v{vm[0]}\nds_write_b32 v{vVM}, v{vm[1]} offset:128')
    cfill(2)
    a.wait_lg()
    a.e('s_barrier')
    pt(a,4)
    if w==3 and PW==3:
        for i in range(4): a.e(f'ds_read_b128 {vr(slot(2)+4*i,4)}, v{vLM} offset:{KBF-MEMB+i*1024}',tag=('pd',i))
        cfill(4)
        for i in range(4):
            a.wait_lg(('pd',i))
            a.e(f'buffer_store_dwordx4 {vr(slot(2)+4*i,4)}, v{vLM}, {WS}, {sKVM} offen offset:{i*1024} sc1',tag='pub')
        a.e(f's_add_u32 {sKVM}, {sKVM}, {KVMB}')
    fin=a.newlabel('ch_fin')
    a.e(f's_cmp_ge_u32 {sItem}, 63'); a.e(f's_cbranch_scc1 {fin}')
    if w<3:
        for k2 in range(4):
            a.e(f'ds_read_b128 {vr(acc+4*k2,4)}, v{vQR} offset:{QO+k2*512}',tag=('q',k2))
            if w==2: a.e(f'ds_read_b128 {vr(slot(2)+4*k2,4)}, v{vKR} offset:{k2*512}',tag=('q',k2))
        cfill(2)
        if w<2: a.wait_vm('kx')
        for k2 in range(4):
            a.wait_lg(('q',k2))
            a.e(f'v_mfma_f32_16x16x32_bf16 {vr(ar,4)}, {vr(slot(2)+4*k2,4)}, {vr(acc+4*k2,4)}, {"0" if k2==0 else vr(ar,4)}')
        a.e(f'ds_write_b128 v{vQR}, {vr(ar,4)} offset:{SXO+w*512}')
    else: cfill(2)
    cq+=sload_ops(Cslot[2],2,('C',2))+sload_ops(Cslot[3],3,('C',3))
    cfill(2)
    a.wait_lg()
    a.e('s_barrier')
    pt(a,5)
    s=acc
    a.e(f'ds_read_b128 {vr(s,4)}, v{vQR} offset:{SXO}\nds_read_b128 {vr(s+4,4)}, v{vQR} offset:{SXO+512}\nds_read_b64 {vr(s+8,2)}, v{vQR} offset:{SXO+1024}')
    cfill(2)
    a.wait_lg()
    m=T
    a.e(f'v_max3_f32 v{m}, v{s}, v{s+1}, v{s+2}\nv_max3_f32 v{m+1}, v{s+3}, v{s+4}, v{s+5}\nv_max3_f32 v{m+2}, v{s+6}, v{s+7}, v{s+8}')
    a.e(f'v_max3_f32 v{m}, v{m}, v{m+1}, v{s+9}\nv_max_f32 v{m}, v{m}, v{m+2}')
    def xl(op,x,t):
        a.e(f'v_mov_b32 v{t}, v{x}\nv_permlane32_swap_b32 v{x}, v{t}\n{op} v{x}, v{x}, v{t}')
        a.e(f'v_mov_b32 v{t}, v{x}\nv_permlane16_swap_b32 v{x}, v{t}\n{op} v{x}, v{x}, v{t}')
    xl('v_max_f32',m,m+1)
    a.e(f'v_mul_f32 v{m}, s35, v{m}')
    for i in range(10): a.e(f'v_fma_f32 v{s+i}, v{s+i}, s35, -v{m}')
    cfill(1)
    for i in range(10): a.e(f'v_exp_f32 v{s+i}, v{s+i}')
    cfill(1)
    P=ar; Pm=ar+4; o=acc+8
    cvt_pack(a,P,s,8)
    a.e(f'v_cvt_pk_bf16_f32 v{Pm}, v{s+8}, v{s+9}\nv_mov_b32 v{Pm+1}, 0')
    a.e(f'v_add_f32 v{m}, v{s+8}, v{s+9}')
    pt(a,6)
    a.wait_vm('vx')
    for j in range(2): a.e(f'v_mfma_f32_16x16x32_bf16 {vr(o+4*j,4)}, {vr(slot(4)+4*j,4)}, {vr(P,4)}, 0')
    for j in range(2): a.e(f'v_mfma_f32_16x16x16_bf16 {vr(o+4*j,4)}, {vr(vm[j],2)}, {vr(Pm,2)}, {vr(o+4*j,4)}')
    for i in range(0,8,2): a.e(f'v_add_f32 v{s+i}, v{s+i}, v{s+i+1}')
    a.e(f'v_add3_u32 v{m+1}, 0, 0, 0' if False else f'v_add_f32 v{s}, v{s}, v{s+2}\nv_add_f32 v{s+4}, v{s+4}, v{s+6}\nv_add_f32 v{m}, v{m}, v{s}\nv_add_f32 v{m}, v{m}, v{s+4}')
    xl('v_add_f32',m,m+1)
    a.e(f'v_rcp_f32 v{m}, v{m}')
    for i in range(8): a.e(f'v_mul_f32 v{o+i}, v{o+i}, v{m}')
    cvt_pack(a,T+2,o,8)
    a.e(f'ds_write_b128 v{vOW}, {vr(T+2,4)}')
    za=[acc+4*i for i in range(6)]+[slot(4),slot(4)+4,T+2,acc+8]
    cfill(9)
    zero(acc,24); zero(slot(4),8); zero(T+2,4)
    a.wait_lg()
    a.e('s_barrier')
    pt(a,7)
    a.e(f'ds_read_b128 {vr(ar,4)}, v{vLM} offset:{QB-MEMB}',tag='z0'); a.e(f'ds_read_b128 {vr(ar+4,4)}, v{vLM} offset:{QB-MEMB+1024}',tag='z1')
    stamp(a,T,None,2)
    a.e(f's_and_b32 s48, {sItem}, 1\ns_mov_b64 vcc, s[22:23]')
    if w==PW and OPT.get('fpos',1)==1:
        a.wait_vm('pub'); a.e(f's_add_u32 s60, {sItem}, 1'); publish(a,T,None,sFo,'s60',WS)
    a.wait_lg('z1')
    fl=[]
    for p in range(10):
        x=za[p]; fl+=[(2*p+4,f'v_add_f32 v{x}, v{x}, v{x+2}'),(2*p+4,f'v_add_f32 v{x+1}, v{x+1}, v{x+3}')]
        if p%2==1:
            x,y=za[p-1],za[p]
            if p==1: d0,d1=y+2,y+3
            else:
                U=za[0] if p<6 else za[3]; q_=((p-3)//2)%2
                d0,d1=U+q_,U+2+q_
            for tx in (f'v_cvt_pk_bf16_f32 v{d0}, v{x}, v{y}',f'v_cvt_pk_bf16_f32 v{d1}, v{x+1}, v{y+1}',f'v_bfi_b32 v{d0}, 1, s48, v{d0}',f'v_bfi_b32 v{d1}, 1, s48, v{d1}'):
                fl.append((2*p+4,tx))
            if p==1: fl+=[(0,f'v_cndmask_b32_dpp v{y}, v{d1}, v{d0}, vcc quad_perm:[1,0,3,2] row_mask:0xf bank_mask:0xf'),(0,'s_not_b64 vcc, vcc'),
                          (0,f'v_cndmask_b32_dpp v{y+1}, v{d0}, v{d1}, vcc quad_perm:[1,0,3,2] row_mask:0xf bank_mask:0xf'),
                          (0,f'buffer_store_dwordx2 {vr(y,2)}, v{vPL}, {WS}, s65 offen{RS}')]
            if p==3: fl+=[(0,f'v_mov_b64 {vr(za[9],2)}, 0'),(0,f'v_mov_b64 {vr(za[9]+2,2)}, 0')]
            if p==5: fl.append((0,f'buffer_store_dwordx4 {vr(za[0],4)}, v{vPM}, {WS}, s64 offen{RS}'))
            if p==9: fl.append((0,f'buffer_store_dwordx4 {vr(za[3],4)}, v{vPM}, {WS}, s63 offen{RS}'))
    zq=sload_ops(Aslot[6],6,'A')+sload_ops(Aslot[5],5,'A')
    for k,(t,ks) in enumerate(ZSEQ):
        if k==18: assert not any('v_mov_b64' in x[1] for x in fl)
        smf(za[k//2],ar+4*ks,ZF[k])
        if k in (4,7,11,14): zq.pop(0)()
        for _ in range(OPT.get('zfill',3)):
            if fl and fl[0][0]<=k: a.e(fl.pop(0)[1],tag='ps')
    for x in fl: a.e(x[1],tag='ps')
    stamp(a,T,None,3); pt(a,8)
    def late():
        preL()
        if w>=OPT.get('lw',2):
            if OPT.get('s1',0): a.e(f's_sleep {OPT.get("s1",1)}')
            for o in lops: o()
    late()
    if w==FW:
        a.wait_vm('fl')
        a.e(f's_add_u32 {sNeed}, {sItem}, 2')
        flag_check(a,vRO,sNeed); a.e('s_cselect_b32 s21, 1, 0')
    a.e(f's_add_u32 {sItem}, {sItem}, 1')
    if w==PW and OPT.get('fpos',1)==0: a.wait_vm('pub'); pubflag()
    a.e(f's_and_b32 s60, {sItem}, 3\ns_lshl_b32 s60, s60, 14\ns_add_u32 {sMw}, s34, s60\ns_xor_b32 s60, s60, 0x8000\ns_add_u32 {sMz}, s34, s60')
    def maxtree(b,n,t):
        a.e(f'v_max3_u32 v{t}, v{b}, v{b+1}, v{b+2}')
        i=3
        while i<n:
            if i+1<n: a.e(f'v_max3_u32 v{t}, v{t}, v{b+i}, v{b+i+1}'); i+=2
            else: a.e(f'v_max_u32 v{t}, v{t}, v{b+i}'); i+=1
        a.e(f'v_cmp_eq_u32 vcc, -1, v{t}')
    def mx(first,b,t):
        if first: a.e(f'v_max3_u32 v{t}, v{b}, v{b+1}, v{b+2}\nv_max_u32 v{t}, v{t}, v{b+3}')
        else: a.e(f'v_max3_u32 v{t}, v{t}, v{b}, v{b+1}\nv_max3_u32 v{t}, v{t}, v{b+2}, v{b+3}')
    def tail(L,err):
        a.e(f's_add_u32 {sCnt}, {sCnt}, 1\ns_cmp_lt_u32 {sCnt}, {POLL_LIMIT}'); a.e(f's_cbranch_scc1 {L} ; nopad')
        a.e(f's_mov_b32 {sErr}, {err}'); a.e('s_branch L_fail')
    a.e(f's_mov_b32 {sCnt}, 0')
    after=[]
    if w<2:
        n=8; sb='s66' if w==0 else 's67'
        nored=a.newlabel('ch_nr')
        if w==1: a.e(f's_cmp_ge_u32 {sH}, 8'); a.e(f's_cbranch_scc1 {nored}')
        a.e(f's_add_u32 s68, {sb}, 4096')
        if OPT.get('d1',9) and w==0: a.e(f's_sleep {OPT.get("d1",9)}')
        D4=T+2
        sets=[ar,POOL]
        def iss(b):
            for i in range(8): a.e(f'buffer_load_dwordx4 {vr(b+4*i,4)}, v{vLM}, {WS}, {sb if i<4 else "s68"} offen offset:{(i%4)*1024} sc1')
        def chk(b,base):
            for i in range(8):
                a.e(f's_waitcnt vmcnt({base+7-i})')
                a.e(f'v_mfma_f32_16x16x32_bf16 {vr(D4,4)}, {vr(selr,4)}, {vr(b+4*i,4)}, {"0" if i==0 else vr(D4,4)}')
                x=b+4*i
                a.e(f'v_bitop3_b32 v{T+1}, v{x}, v{x+1}, s48 bitop3:0x7e\nv_bitop3_b32 v{x}, v{x+2}, v{x+3}, s48 bitop3:0x7e' if False else
                    f'v_bitop3_b32 v{T+1}, v{x}, v{x+1}, s48 bitop3:0x7e')
                if i==0: a.e(f'v_bitop3_b32 v{T}, v{x+2}, v{x+3}, s48 bitop3:0x7e\nv_or_b32 v{T}, v{T}, v{T+1}')
                else: a.e(f'v_bitop3_b32 v{vFA}, v{x+2}, v{x+3}, s48 bitop3:0x7e\nv_or3_b32 v{T}, v{T}, v{T+1}, v{vFA}')
            a.e(f'v_and_b32 v{T}, 1, v{T}\nv_cmp_eq_u32 vcc, 1, v{T}')
        L=a.newlabel('ch_r'); Dn=a.newlabel('ch_rd')
        if OPT.get('dbl',0):
            iss(sets[0])
            a.label(L,nopad=True)
            iss(sets[1]); chk(sets[0],8); pt(a,11); a.e(f's_cbranch_vccz {Dn} ; nopad')
            iss(sets[0]); chk(sets[1],8); a.e(f's_cbranch_vccz {Dn} ; nopad')
        else:
            a.label(L,nopad=True)
            iss(sets[0]); chk(sets[0],0); pt(a,11,1); a.e(f's_cbranch_vccz {Dn} ; nopad')
        tail(L,9)
        a.label(Dn,nopad=True)
        a.vm=['stale']
        a.e('s_nop 3')
        cvt_pack(a,T,D4,4)
        a.e(f'v_min_u32 v{T}, -2, v{T}\nv_min_u32 v{T+1}, -2, v{T+1}')
        a.e('s_mov_b32 exec_hi, 0')
        a.e(f'buffer_store_dwordx2 {vr(T,2)}, v{vRO}, {WS}, {sMw} offen{RS}')
        a.e('s_mov_b64 exec, -1')
        a.label(nored)
        a.wait_lg()
        a.e('s_barrier')
        pt(a,9,1)
        stamp(a,T+2,None,4)
        if w<OPT.get('lw',2):
            for o in lops: o()
        a.wait_vm()
    else:
        a.e(f's_add_u32 s68, {sMw}, {5*(w-2)*1024-MEMB}\ns_add_u32 s69, s68, 4096')
        if w==FW: kvflag()
        if OPT.get('diag',0)==2: a.wait_vm('A'); pt(a,11)
        a.wait_lg()
        a.e('s_barrier')
        pt(a,9,1)
        if OPT.get('d2',6): a.e(f's_sleep {OPT.get("d2",6)}')
        L=a.newlabel('ch_m'); Dn=a.newlabel('ch_md'); F=a.newlabel('ch_mf')
        a.label(L,nopad=True)
        for i in range(5): a.e(f'buffer_load_dwordx4 {vr(acc+4*i,4)}, v{vLM}, {WS}, {"s68" if i<4 else "s69"} offen offset:{(i%4)*1024} sc1')
        for i in range(5):
            a.e(f's_waitcnt vmcnt({4-i})')
            a.e(f'ds_write_b128 v{vLM}, {vr(acc+4*i,4)} offset:{(5*(w-2)+i)*1024}')
            mx(i==0,acc+4*i,T)
        a.e(f'v_cmp_eq_u32 vcc, -1, v{T}')
        if OPT.get('diag',0)!=2: pt(a,11,1)
        a.e(f's_cbranch_vccnz {F} ; nopad')
        after.append((F,L))
        a.vm=[]
        stamp(a,T,None,4)
    pt(a,10,1); pacc(a,11)
    if OPT['ts']==3 and OPT.get('raw',0):
        a.e(f's_cmp_eq_u32 {sItem}, {OPT["raw"]}\ns_cselect_b32 s95, {sCnt}, s95')
    elif OPT['ts']==3:
        if OPT.get('diag',0)==0: a.e(f's_add_u32 s95, s95, {sCnt}')
        else: a.e(f's_sub_u32 s97, s92, s{70+2*(8 if (w<2 or OPT.get("diag",0)==2) else 9)}\ns_add_u32 s95, s95, s97')
    a.e(f's_branch {top}')
    for F,L in after:
        a.label(F,nopad=True); tail(L,10)
    a.label(fin)
    pdump(a,T)
    if w==PW:
        a.e('s_waitcnt vmcnt(0)')
        publish(a,T,None,sFo,64,WS)
    a.e('s_branch L_end')
```

```python
from asmb import *
from layout import *
from pre import srd, sdiv, KARG
import struct
def f2u(x): return struct.unpack('<I',struct.pack('<f',x))[0]
WS='s[4:7]'; OUT='s[8:11]'; DBG='s[12:15]'; MEM0='s[16:19]'; WST='s[24:27]'
sRole,sWave='s2','s3'
sItem,sPref,sPend,sNeed='s28','s29','s30','s31'
sCnt,sLayer,sErr='s38','s39','s40'
POLL_LIMIT=40000
OPT={'ts':False}
class VA:
    def __init__(self,start=1,end=256): self.n=start; self.end=end
    def get(self,n=1,al=None):
        al=al or (2 if n>=2 else 1)
        self.n=(self.n+al-1)//al*al
        r=self.n; self.n+=n
        assert self.n<=self.end, 'out of vgprs'
        return r
def flag_check(a,vF,need,bias=None):
    if bias:
        a.e(f'v_add_u32 v{bias[1]}, v{bias[0]}, v{vF}'); vF=bias[1]
    a.e(f'v_cmp_le_u32 vcc, {need}, v{vF}')
    a.e('s_cmp_eq_u64 vcc, -1')
def poll_block(a,vAddr,need,vF,err,sleep=1,bias=None,soff='0'):
    L=a.newlabel('poll'); D=a.newlabel('polld')
    a.e(f's_mov_b32 {sCnt}, 0')
    a.label(L)
    a.e(f'buffer_load_dword v{vF}, v{vAddr}, {WS}, {soff} offen sc1')
    a.e('s_waitcnt vmcnt(0)')
    flag_check(a,vF,need,bias)
    a.e(f's_cbranch_scc1 {D}')
    if sleep: a.e(f's_sleep {OPT.get("sleep",2) if sleep==1 else sleep}')
    a.e(f's_add_u32 {sCnt}, {sCnt}, 1\ns_cmp_lt_u32 {sCnt}, {POLL_LIMIT}')
    a.e(f's_cbranch_scc1 {L}')
    a.e(f's_mov_b32 {sErr}, {err}')
    a.e('s_branch L_fail')
    a.label(D)
    a.vm=[]
def publish(a,vT,vZ,sOff,val,srdn=WST):
    a.e(f'v_mov_b32 v{vT}, {val}')
    a.e('s_mov_b64 exec, 1')
    a.e(f'buffer_store_dword v{vT}, off, {srdn}, {sOff} sc1')
    a.e('s_mov_b64 exec, -1')
def stamp(a,vT,vZ,slot,item=sItem):
    if OPT['ts'] not in (1,2): return
    a.e('s_memrealtime s[98:99]' if OPT['ts']==1 else 's_memtime s[98:99]')
    a.e(f's_lshl_b32 s97, {sRole}, 2\ns_add_u32 s97, s97, {sWave}\ns_lshl_b32 s97, s97, 6\ns_add_u32 s97, s97, {item}\ns_lshl_b32 s97, s97, 5\ns_add_u32 s97, s97, {TSB+slot*4}')
    a.e('s_waitcnt lgkmcnt(0)'); a.lg=[]
    a.e(f'v_mov_b32 v{vT}, s98')
    a.e('s_mov_b64 exec, 1')
    a.e(f'buffer_store_dword v{vT}, off, {WS}, s97')
    a.e('s_mov_b64 exec, -1')
TSB=250*MB
assert WS_END<=TSB
def cvt_pack(a,dst,src,n):
    for i in range(n//2):
        a.e(f'v_cvt_pk_bf16_f32 v{dst+i}, v{src+2*i}, v{src+2*i+1}')
GC0=-2*0.7978845608028654*1.4426950408889634
GC1=GC0*0.044715
def gelu(a,x,n,t,sC0,sC1):
    for i in range(n): a.e(f'v_mul_f32 v{t+i}, v{x+i}, v{x+i}')
    for i in range(n): a.e(f'v_fma_f32 v{t+i}, v{t+i}, {sC1}, {sC0}')
    for i in range(n): a.e(f'v_mul_f32 v{t+i}, v{t+i}, v{x+i}')
    for i in range(n): a.e(f'v_exp_f32 v{t+i}, v{t+i}')
    for i in range(n): a.e(f'v_add_f32 v{t+i}, 1.0, v{t+i}')
    for i in range(n): a.e(f'v_rcp_f32 v{t+i}, v{t+i}')
    for i in range(n): a.e(f'v_mul_f32 v{x+i}, v{x+i}, v{t+i}')
def tile_stats(a,x,s0,t0):
    a.e(f'v_add_f32 v{s0}, v{x}, v{x+1}\nv_mul_f32 v{s0+1}, v{x}, v{x}\nv_fmac_f32 v{s0+1}, v{x+1}, v{x+1}')
    for i in range(2,16):
        a.e(f'v_add_f32 v{s0}, v{s0}, v{x+i}\nv_fmac_f32 v{s0+1}, v{x+i}, v{x+i}')
    a.e(f'v_mov_b32 v{t0}, v{s0}\nv_mov_b32 v{t0+1}, v{s0+1}')
    a.e(f'v_permlane32_swap_b32 v{s0}, v{t0}\nv_permlane32_swap_b32 v{s0+1}, v{t0+1}')
    a.e(f'v_add_f32 v{s0}, v{s0}, v{t0}\nv_add_f32 v{s0+1}, v{s0+1}, v{t0+1}')

def lsel(a,dst,arr,add=0):
    a.e(f's_mul_i32 {dst}, {sLayer}, {hex(arr[1]-arr[0])}\ns_add_u32 {dst}, {dst}, {hex(arr[0]+add)}')

PACC=[50,51,52,53,54,55,56,57,58,100,94,95]
def pinit(a):
    if OPT['ts']==4:
        for k in range(12): a.e(f's_mov_b32 s{70+2*k}, 0')
    if OPT['ts']!=3: return
    for r in PACC: a.e(f's_mov_b32 s{r}, 0')
    a.e('s_mov_b32 s96, 0')
def pt(a,k,d=0):
    if OPT['ts']==3 and k<12: a.e(f's_memtime s[{70+2*k}:{71+2*k}]')
    if OPT['ts']==4:
        k%=12
        l=a.newlabel('pt'); a.e(f's_cmp_lg_u32 {sItem}, {OPT["raw"]+d}'); a.e(f's_cbranch_scc1 {l} ; nopad')
        a.e(f's_memrealtime s[{70+2*k}:{71+2*k}]'); a.label(l,nopad=True)
def pacc(a,n):
    if OPT['ts']!=3: return
    a.e('s_waitcnt lgkmcnt(0)'); a.lg=[]
    sk=a.newlabel('pa')
    if OPT.get('raw',0):
        a.e(f's_cmp_lg_u32 {sItem}, {OPT["raw"]}'); a.e(f's_cbranch_scc1 {sk}')
        for k in range(n): a.e(f's_mov_b32 s{PACC[k]}, s{70+2*k}')
        a.label(sk)
        return
    a.e(f's_cmp_lt_u32 {sItem}, 6'); a.e(f's_cbranch_scc1 {sk}')
    a.e(f's_sub_u32 s97, s70, s96\ns_add_u32 s{PACC[n-1]}, s{PACC[n-1]}, s97')
    for k in range(n-1):
        a.e(f's_sub_u32 s97, s{72+2*k}, s{70+2*k}\ns_add_u32 s{PACC[k]}, s{PACC[k]}, s97')
    a.label(sk)
    a.e(f's_mov_b32 s96, s{70+2*(n-1)}')
def pdump(a,vT):
    if OPT['ts'] not in (3,4): return
    if OPT['ts']==4:
        a.e('s_waitcnt lgkmcnt(0)')
        for k,r in enumerate(PACC): a.e(f's_mov_b32 s{r}, s{70+2*k}')
    a.e(f's_lshl_b32 s97, {sRole}, 2\ns_add_u32 s97, s97, {sWave}\ns_lshl_b32 s97, s97, 11\ns_add_u32 s97, s97, {TSB}')
    for k,r in enumerate(PACC):
        a.e(f'v_mov_b32 v{vT}, s{r}')
        a.e(f'buffer_store_dword v{vT}, off, {WS}, s97 offset:{4*k}')

sLoc='s21'
def local_setup(a,vA,vB):
    import common
    a.e(f's_lshr_b32 s20, {sRole}, 5')
    common.wait_all_registered(a,vA,vB,stop_slot='s20')
    a.e(f's_cmp_ge_u32 s58, 32\ns_cselect_b32 {sLoc}, 1, 0')
    if OPT.get('slow',0) or not OPT.get('loc',1): a.e(f's_mov_b32 {sLoc}, 0')
def lstore(a,texts):
    if isinstance(texts,str): texts=[texts]
    l1=a.newlabel('ls'); l2=a.newlabel('ls')
    a.e(f's_cmp_eq_u32 {sLoc}, 0'); a.e(f's_cbranch_scc1 {l1} ; nopad')
    for t in texts: a.e(t)
    a.label(l2,nopad=True)
    OOL.append((l1,l2,texts))
OOL=[]
def flush_ool(a):
    for l1,l2,texts in OOL:
        a.label(l1)
        for t in texts: a.e(t+' sc1')
        a.e('s_nop 1'); a.e(f's_branch {l2}')
    OOL.clear(); a.reset_track()
def lpublish(a,vT,sOff,val,srdn=WST):
    a.e(f'v_mov_b32 v{vT}, {val}')
    a.e('s_mov_b64 exec, 1')
    lstore(a,f'buffer_store_dword v{vT}, off, {srdn}, {sOff}')
    a.e('s_mov_b64 exec, -1')

def repoff(a,dst,item,add=0):
    a.e(f's_add_u32 {dst}, {item}, {add}\ns_mul_i32 s59, {dst}, 43\ns_lshr_b32 s59, s59, 7\ns_mul_i32 s59, s59, 3\ns_sub_u32 s59, {dst}, s59')
    a.e(f's_min_u32 s101, {dst}, {PHB-1}\ns_sub_u32 s101, s101, {PHA}\ns_and_b32 s101, s101, 1\ns_cmp_lt_u32 {dst}, {PHA}\ns_cselect_b32 {dst}, s59, s101')
    a.e(f's_cmp_eq_u32 {sLayer}, 0\ns_cselect_b32 {dst}, {dst}, 0\ns_lshl_b32 {dst}, {dst}, 2')
```

```python
from common import *
from wload import *
def fast_stats(a,x,s0,t):
    for i in range(0,8,2): a.e(f'v_pk_add_f32 {vr(t+i,2)}, {vr(x+i,2)}, {vr(x+8+i,2)}')
    a.e(f'v_pk_add_f32 {vr(t,2)}, {vr(t,2)}, {vr(t+2,2)}\nv_pk_add_f32 {vr(t+4,2)}, {vr(t+4,2)}, {vr(t+6,2)}')
    a.e(f'v_pk_mul_f32 {vr(t+2,2)}, {vr(x,2)}, {vr(x,2)}\nv_pk_mul_f32 {vr(t+6,2)}, {vr(x+2,2)}, {vr(x+2,2)}')
    a.e(f'v_pk_add_f32 {vr(t,2)}, {vr(t,2)}, {vr(t+4,2)}')
    for i in range(4,16,4): a.e(f'v_pk_fma_f32 {vr(t+2,2)}, {vr(x+i,2)}, {vr(x+i,2)}, {vr(t+2,2)}\nv_pk_fma_f32 {vr(t+6,2)}, {vr(x+i+2,2)}, {vr(x+i+2,2)}, {vr(t+6,2)}')
    a.e(f'v_add_f32 v{s0}, v{t}, v{t+1}\nv_pk_add_f32 {vr(t+2,2)}, {vr(t+2,2)}, {vr(t+6,2)}\nv_mov_b32 v{t}, v{s0}\nv_add_f32 v{s0+1}, v{t+2}, v{t+3}\nv_mov_b32 v{t+1}, v{s0+1}')
    a.e(f'v_permlane32_swap_b32 v{s0}, v{t}\nv_permlane32_swap_b32 v{s0+1}, v{t+1}')
    a.e(f'v_pk_add_f32 {vr(s0,2)}, {vr(s0,2)}, {vr(t,2)}')
def gen_ks(a,kind):
    wo = kind=='wo'
    NT,NK = (2,32) if wo else (2,27)
    KSW = 256 if wo else 108
    va=VA(1,256)
    def wnum(t,k): return 256+4*(t*NK+k)
    def wreg(t,k): return R(wnum(t,k),4)
    vL16=va.get(); vFA=va.get(); vBias=va.get(); vF=va.get(); vF2=va.get(); vLW=va.get(); vLR=va.get(); vTok8=va.get(); vOut=va.get(); T=va.get(4,2)
    acc=[va.get(16,4) for _ in range(NT)]
    A=va.get(4*NK,4)
    res=va.get(16,4); px=va.get(16,4); xs=va.get(16,4); z=va.get(16,4)
    sFin='s67'
    err=11 if wo else 12
    a.e(f'v_lshlrev_b32 v{vL16}, 4, v0')
    a.e(f's_mov_b32 s24, s4\ns_mov_b32 s25, s5\ns_mov_b32 s26, s6\ns_mov_b32 s27, 0x20000')
    if wo:
        a.e('s_cmp_ge_u32 s42, 10\ns_cselect_b32 s44, 1, 0\ns_cselect_b32 s43, 10, 0\ns_sub_u32 s43, s42, s43\ns_lshl_b32 s43, s43, 1')
        a.e(f's_lshl_b32 s45, s44, 2\ns_add_u32 s45, s45, {sWave}\ns_lshl_b32 s45, s45, 5')
    else:
        a.e(f's_lshl_b32 s43, s42, 1\ns_mul_i32 s45, {sWave}, 27\ns_mov_b32 s44, 0')
    a.e(f's_and_b32 s48, {sWave}, 1\ns_add_u32 s49, s43, s48')
    wsrd(a,KARG['o' if wo else 'w4'],KSW*16*1280)
    for t in range(NT):
        a.e(f's_xor_b32 s46, s49, {t}\ns_lshl_b32 s46, s46, 6\ns_mul_i32 s{64+t}, s45, {16*1280}\ns_add_u32 s{64+t}, s{64+t}, s46')
    a.e(f's_mul_i32 s41, s42, {13 if wo else 11}')
    sdiv(a,'s46','s41','s41',NK,'s47')
    def rotoff(k,scale):
        def f(d): a.e(f's_add_u32 {d}, s41, {k-NK}\ns_cselect_b32 s47, 0, {NK}\ns_add_u32 {d}, {d}, s47\ns_mul_i32 {d}, {d}, {scale}')
        return f
    load_dense(a,[(wnum(t,k),f's{64+t}',rotoff(k,16*1280)) for k in range(NK) for t in range(NT)],1280,res,res+1,res+2)
    a.e('s_lshl_b32 s41, s41, 10')
    if wo: local_setup(a,res,res+1)
    wait_init(a,res,res+1,wo)
    lsel(a,'s32',O if wo else G); a.e('s_lshl_b32 s46, s45, 10\ns_add_u32 s32, s32, s46')
    IB=OB if wo else GB
    if wo:
        lsel(a,'s46',[FLAG(0,ST_ATT),FLAG(1,ST_ATT)]); a.e(f's_lshl_b32 s47, s45, {FSH-3}\ns_add_u32 s46, s46, s47')
        a.e(f'v_and_b32 v{vFA}, 3, v0')
    else:
        lsel(a,'s46',[FLAG(0,ST_G),FLAG(1,ST_G)]); a.e(f's_lshr_b32 s47, s45, 1\nv_min_u32 v{vFA}, 13, v0\nv_add_u32 v{vFA}, s47, v{vFA}')
    a.e(f'v_lshlrev_b32 v{vFA}, {FSH}, v{vFA}\nv_add_u32 v{vFA}, s46, v{vFA}')
    bias=None
    if wo:
        lsel(a,'s46',[FLAG(0,ST_X1),FLAG(1,ST_X1)]); a.e(f's_lshl_b32 s47, s43, {FSH}\ns_add_u32 s46, s46, s47')
        a.e(f'v_and_b32 v{T}, 1, v0\nv_lshlrev_b32 v{T}, {FSH}, v{T}\nv_add_u32 v{T}, s46, v{T}\nv_cmp_lt_u32 vcc, 31, v0')
        a.e('s_cmp_eq_u32 s44, 0\ns_cselect_b64 vcc, 0, vcc')
        a.e(f'v_cndmask_b32 v{vFA}, v{vFA}, v{T}, vcc\nv_cndmask_b32 v{vBias}, 0, 8, vcc\nv_cndmask_b32 v{vOut}, 4, 0, vcc')
        bias=(vBias,vF2)
    a.e('s_lshl_b32 s60, s49, 11')
    if wo:
        lsel(a,'s33',XIN); a.e('s_add_u32 s33, s33, s60')
        lsel(a,'s36',X1)
        lsel(a,'s34',PX); a.e('s_lshl_b32 s46, s49, 12\ns_add_u32 s34, s34, s46')
        lsel(a,'s37',[FLAG(0,ST_X1),FLAG(1,ST_X1)]); a.e(f's_lshl_b32 s61, s49, {FSH}\ns_add_u32 s37, s37, s61')
    else:
        lsel(a,'s33',X1); a.e('s_add_u32 s33, s33, s60')
        lsel(a,'s34',X1P); a.e('s_add_u32 s34, s34, s60')
        a.e(f's_mov_b32 s36, {XIN[1]}')
        a.e(f's_lshl_b32 s61, s49, {FSH}\ns_add_u32 s37, s61, {FLAG(1,ST_X)}')
        a.e('s_lshl_b32 s62, s49, 6')
        a.e(f'v_and_b32 v{vOut}, 31, v0\nv_mul_u32_u24 v{vOut}, 1280, v{vOut}\nv_lshrrev_b32 v{T}, 5, v0\nv_lshl_add_u32 v{vOut}, v{T}, 4, v{vOut}')
    a.e(f's_lshl_b32 s61, s49, 8\ns_add_u32 s63, s36, s61\ns_add_u32 s63, s63, {STAT}\ns_add_u32 s36, s36, s60')
    a.e(f'v_and_b32 v{vTok8}, 31, v0\nv_lshlrev_b32 v{vTok8}, 3, v{vTok8}')
    a.e(f's_lshl_b32 s46, s44, 1\ns_add_u32 s46, s46, {sWave}\ns_cmp_lt_u32 s46, 2\ns_cselect_b32 {sFin}, 1, 0\ns_cselect_b32 s26, s6, 0')
    LBUF=32768
    DL=OPT.get('dl',14)
    def loadA(k,nxt=0):
        a.e(f's_cmp_lt_u32 s41, {(NK-k)*1024}\ns_cselect_b32 s46, s32, s65\ns_add_u32 s46, s46, {(k//4)*4096+nxt*IB}')
        a.e(f'buffer_load_dwordx4 {vr(A+4*k,4)}, v{vL16}, {WS}, s46 offen offset:{(k%4)*1024} sc1')
    a.e(f's_add_u32 s32, s32, s41\ns_sub_u32 s65, s32, {NK*1024}')
    a.e(f's_lshl_b32 s46, s48, 14\nv_add_u32 v{vLR}, s46, v{vL16}\ns_lshl_b32 s46, {sWave}, 12\nv_add_u32 v{vLW}, s46, v{vLR}')
    a.e(f's_mov_b32 {sItem}, 0\ns_mov_b32 {sNeed}, 1')
    poll_block(a,vFA,sNeed,vF,err,bias=bias)
    for k in range(DL): loadA(k)
    pollld=f'buffer_load_dword v{vF}, v{vFA}, {WS}, 0 offen sc1'
    def pxload():
        for i in range(4): a.e(f'buffer_load_dwordx4 {vr(px+4*i,4)}, v{vL16}, {WST}, s68 offen offset:{i*1024} sc1')
    pinit(a)
    top=a.newlabel('ks_top'); a.label(top); a.reset_track()
    a.e(f's_cmp_ge_u32 {sItem}, 64'); a.e('s_cbranch_scc1 L_end')
    stamp(a,T,None,0); pt(a,0)
    nov=a.newlabel('ks_n'); join=a.newlabel('ks_j')
    NR=2 if wo else 4
    a.e(f's_add_u32 {sNeed}, {sItem}, 2\ns_mov_b32 {sPref}, 0')
    if wo:
        a.e(f'v_xor_b32 v{vFA}, v{vFA}, v{vOut}')
        a.e(f's_and_b32 s68, {sItem}, 7\ns_mul_i32 s68, s68, {PXB}\ns_add_u32 s68, s68, s34\ns_bfe_u32 s66, {sItem}, 0x10003')
    KD=NK-DL; KP=max(0,KD-OPT.get('kp',11)); KU=KP+DL+1
    assert KU+4<NK
    def unp():
        o=[]
        for i in range(8): o+=[f'v_lshlrev_b32 v{xs+2*i}, 16, v{res+i}',f'v_and_b32 v{xs+2*i+1}, 0xffff0000, v{res+i}']
        if not wo:
            for i in range(8): o+=[f'v_lshlrev_b32 v{T}, 16, v{res+8+i}',f'v_and_b32 v{T+1}, 0xffff0000, v{res+8+i}',f'v_add_f32 v{xs+2*i}, v{xs+2*i}, v{T}',f'v_add_f32 v{xs+2*i+1}, v{xs+2*i+1}, v{T+1}']
        return o
    def step(k,Pv,fq):
        n=min(DL-1,NK-1-k) if not Pv else DL-1
        a.e(f's_waitcnt vmcnt({n})')
        if k==KU: fq+=unp()
        for t in ((1,0) if k==NK-1 else (0,1)):
            a.e(f'v_mfma_f32_32x32x16_bf16 {vr(acc[t],16)}, {wreg(t,k)}, {vr(A+4*k,4)}, {"0" if k==0 else vr(acc[t],16)}')
            bud=4
            if t==0:
                if k<KD: loadA(k+DL); bud=1
                elif Pv: loadA(k-KD,1); bud=1
            for _ in range(bud):
                if fq: a.e(fq.pop(0))
        if k==KP:
            a.e(pollld)
            for i in range(2): a.e(f'buffer_load_dwordx4 {vr(res+4*i,4)}, v{vL16}, {WST}, s33 offen offset:{i*1024} sc1')
            if not wo:
                for i in range(2): a.e(f'buffer_load_dwordx4 {vr(res+8+4*i,4)}, v{vL16}, {WST}, s34 offen offset:{i*1024} sc1')
    fq=[]
    for k in range(KD): step(k,0,fq)
    assert not fq
    a.e(f's_waitcnt vmcnt({KD-1-KP+NR})')
    flag_check(a,vF,sNeed,bias)
    a.e(f's_cbranch_scc0 {nov} ; nopad')
    a.e(f's_mov_b32 {sPref}, 1')
    if wo: pxload()
    for k in range(KD,NK): step(k,1,fq)
    for x in fq: a.e(x)
    a.e(f's_branch {join} ; nopad')
    a.label(nov,nopad=True); fq=[]
    for k in range(KD,NK): step(k,0,fq)
    for x in fq: a.e(x)
    if wo: pxload()
    a.label(join); a.e('s_nop 7\ns_nop 1'); a.reset_track()
    a.e(f's_add_u32 s32, s32, {IB}\ns_add_u32 s65, s65, {IB}')
    stamp(a,T,None,1); pt(a,1)
    a.e(f'v_xor_b32 v{T}, 0x4000, v{vLW}')
    for i in range(4): a.e(f'ds_write_b128 v{T}, {vr(acc[1]+4*i,4)} offset:{i*1024}')
    nfin=a.newlabel('ks_nf'); lo2=a.newlabel('ks_lo')
    a.e(f's_cmp_lt_u32 {sWave}, 2'); a.e(f's_cbranch_scc1 {lo2}')
    for i in range(4): a.e(f'ds_write_b128 v{vLW}, {vr(acc[0]+4*i,4)} offset:{i*1024}')
    a.e(pollld)
    a.wait_lg(); a.e('s_barrier'); pt(a,2)
    a.e(f's_mov_b32 {sPend}, 0')
    a.e(f's_cmp_lg_u32 {sPref}, 0'); a.e(f's_cbranch_scc1 {nfin}')
    a.e('s_waitcnt vmcnt(0)')
    a.e(f's_branch {nfin}')
    a.label(lo2)
    x=acc[0]; y=acc[1]
    for i in range(0,16,2): a.e(f'v_pk_add_f32 {vr(x+i,2)}, {vr(x+i,2)}, {vr(xs+i,2)}')
    a.e(f'v_xor_b32 v{T}, 0x1000, v{vLW}')
    a.e('s_waitcnt lgkmcnt(0)'); a.lg=[]
    a.e('s_barrier'); pt(a,2)
    for i in range(4): a.e(f'ds_read_b128 {vr(y+4*i,4)}, v{T} offset:{i*1024}',tag=1)
    for i in range(4): a.e(f'ds_read_b128 {vr(xs+4*i,4)}, v{vLR} offset:{8192+i*1024}',tag=2)
    for i in range(4): a.e(f'ds_read_b128 {vr(z+4*i,4)}, v{vLR} offset:{12288+i*1024}',tag=3)
    a.e(pollld)
    for tg,r in ((1,y),(2,xs),(3,z)):
        a.wait_lg(tg)
        for i in range(0,16,2): a.e(f'v_pk_add_f32 {vr(x+i,2)}, {vr(x+i,2)}, {vr(r+i,2)}')
    if wo:
        fz=a.newlabel('ks_fz')
        a.e('s_cmp_eq_u32 s44, 0'); a.e(f's_cbranch_scc1 {fz}')
        for h in range(4):
            for i in range(4): a.e(f'v_bfi_b32 v{x+4*h+i}, 1, s66, v{x+4*h+i}')
            lstore(a,f'buffer_store_dwordx4 {vr(x+4*h,4)}, v{vL16}, {WS}, s68 offen offset:{h*1024}')
        a.e(f's_mov_b32 {sPend}, 0')
        a.e(f's_cmp_lg_u32 {sPref}, 0'); a.e(f's_cbranch_scc1 {nfin}')
        a.e('s_waitcnt vmcnt(4)')
        a.e(f's_branch {nfin}')
        a.label(fz)
        a.e(f's_mov_b32 {sCnt}, 0')
        L=a.newlabel('ks_px'); Dn=a.newlabel('ks_pxd'); w1=a.newlabel('ks_w1')
        a.e(f's_waitcnt vmcnt({DL+1})')
        a.e(f's_cmp_lg_u32 {sPref}, 0'); a.e(f's_cbranch_scc1 {L}')
        a.e('s_waitcnt vmcnt(1)')
        a.label(L)
        for i in range(0,16,2): a.e(f'v_bitop3_b32 v{y+i//2}, v{px+i}, v{px+i+1}, s66 bitop3:0x7e')
        a.e(f'v_or3_b32 v{y}, v{y}, v{y+1}, v{y+2}\nv_or3_b32 v{y+3}, v{y+3}, v{y+4}, v{y+5}\nv_or3_b32 v{y}, v{y}, v{y+6}, v{y+7}\nv_or_b32 v{y}, v{y}, v{y+3}\nv_and_b32 v{y}, 1, v{y}\nv_cmp_eq_u32 vcc, 1, v{y}')
        a.e(f's_cbranch_vccz {Dn} ; nopad')
        pxload(); a.e('s_waitcnt vmcnt(0)')
        a.e(f's_add_u32 {sCnt}, {sCnt}, 1\ns_cmp_lt_u32 {sCnt}, {POLL_LIMIT}'); a.e(f's_cbranch_scc1 {L}')
        a.e(f's_mov_b32 {sErr}, 13'); a.e('s_branch L_fail')
        a.label(Dn,nopad=True)
        for i in range(0,16,2): a.e(f'v_pk_add_f32 {vr(x+i,2)}, {vr(x+i,2)}, {vr(px+i,2)}')
    cvt_pack(a,y,x,16)
    if not wo:
        l0=a.newlabel('ks_l0')
        a.e(f's_cmp_eq_u32 {sLayer}, 0'); a.e(f's_cbranch_scc1 {l0}')
        a.e(f's_mul_i32 s46, {sItem}, {32*1280}\ns_add_u32 s46, s46, s62')
        for h in range(2):
            a.e(f'v_permlane32_swap_b32 v{y+4*h}, v{y+4*h+2}\nv_permlane32_swap_b32 v{y+4*h+1}, v{y+4*h+3}')
            a.e(f'buffer_store_dwordx4 {vr(y+4*h,4)}, v{vOut}, {OUT}, s46 offen offset:{h*32}')
        a.e(f's_mov_b32 {sPend}, 0')
        a.e(f's_cmp_lg_u32 {sPref}, 0'); a.e(f's_cbranch_scc1 {nfin}')
        a.e('s_waitcnt vmcnt(2)')
        a.e(f's_branch {nfin}')
        a.label(l0)
    for i in range(2): a.e(f'buffer_store_dwordx4 {vr(y+4*i,4)}, v{vL16}, {WS}, s36 offen offset:{i*1024} sc1')
    fast_stats(a,x,T,z)
    a.e(f'buffer_store_dwordx2 {vr(T,2)}, v{vTok8}, {WS}, s63 offen sc1')
    a.e(f's_mov_b32 {sPend}, 1')
    a.e('s_waitcnt vmcnt(3)')
    a.label(nfin); a.reset_track()
    a.e(f's_add_u32 s33, s33, {SEGB}\ns_add_u32 s36, s36, {SEGB}\ns_add_u32 s63, s63, {SEGB}')
    if not wo: a.e(f's_add_u32 s34, s34, {SEGB}')
    a.e(f's_add_u32 {sItem}, {sItem}, 1\nv_xor_b32 v{vLW}, {LBUF}, v{vLW}\nv_xor_b32 v{vLR}, {LBUF}, v{vLR}')
    pt(a,3,1); pacc(a,4)
    def pub(n):
        l_=a.newlabel('ks_pb')
        a.e(f's_cmp_eq_u32 {sPend}, 0'); a.e(f's_cbranch_scc1 {l_}')
        a.e(f's_waitcnt vmcnt({n})')
        pt(a,18,1)
        publish(a,T+2,None,'s37',sItem,WS)
        a.label(l_)
    np1=a.newlabel('ks_np1'); np2=a.newlabel('ks_np2')
    a.e(f's_cmp_eq_u32 {sPref}, 0'); a.e(f's_cbranch_scc1 {np1}')
    pub(0); a.e(f's_branch {top}')
    a.label(np1)
    flag_check(a,vF,sNeed,bias)
    a.e(f's_cbranch_scc0 {np2}')
    H=OPT.get('dh',6)
    for k in range(H): loadA(k)
    pub(H)
    for k in range(H,DL): loadA(k)
    a.e(f's_branch {top}')
    a.label(np2)
    pub(0)
    fin=a.newlabel('ks_fin')
    a.e(f's_cmp_ge_u32 {sItem}, 64'); a.e(f's_cbranch_scc1 {fin}')
    poll_block(a,vFA,sNeed,vF,err,bias=bias)
    pt(a,19)
    for k in range(DL): loadA(k)
    a.e(f's_branch {top}')
    a.label(fin)
    pdump(a,T)
    a.e('s_branch L_end')
    a.reset_track()
```

```python
KB=1024; MB=1024*1024
NSEG=64
ST_X,ST_QKV,ST_CH,ST_ATT,ST_PX,ST_X1,ST_H,ST_X1P,ST_G = range(9)
FSH=7
def FLAG(layer,stage): return 64*KB+(layer*9+stage)*(256<<FSH)
CLAIM = 32*KB
TS    = 64*KB
RING  = 1*MB
def PM(c): return RING+c*MB
def PL(c): return RING+c*MB+256*KB
def MEMR(c): return RING+c*MB+320*KB
o=3*MB
WN={}
for name,K,N in (('q',640,4096),('k',640,4096),('v',640,4096),('o',4096,640),('w1',640,640),('w2',640,640),('w3',640,1728),('w4',1728,640)):
    WN[name]=(o,K,N); o+=K*N*2
o=(o+MB-1)//MB*MB
CF=o; o+=32*640*KB
SEGB=48*KB
STAT=40*KB
def alloc(n):
    global o
    r=o; o+=n; return r
XIN=[alloc(NSEG*SEGB) for _ in range(2)]
X1=[alloc(NSEG*SEGB) for _ in range(2)]
HS=[alloc((NSEG+2)*SEGB)+SEGB for _ in range(2)]
X1P=[alloc(NSEG*SEGB) for _ in range(2)]
GB=108*KB
G=[alloc(NSEG*GB) for _ in range(2)]
OB=256*KB
O=[alloc(NSEG*OB) for _ in range(2)]
QKVB=3*256*KB
QKV=[alloc(NSEG*QKVB) for _ in range(2)]
KVMB=32*4*KB
KVM=[alloc(NSEG*KVMB) for _ in range(2)]
PXB=80*KB
PX=[RING+c*MB+384*KB for c in range(2)]
SF=[alloc(3*MB) for _ in range(2)]
WS_END=o
assert WS_END<=256*MB, WS_END
if __name__=='__main__': print(WS_END/MB)

import os
PHA=int(os.environ.get('PHA',36)); PHB=int(os.environ.get('PHB',52))
assert PHA%3==0 and (PHB-PHA)%2==0
STEADY=[('qkv',1,8,0,0),('qkv',1,8,16,0),('qkv',1,8,32,0),('att',1,8,0,2),
        ('qkv',1,8,8,0),('qkv',1,8,24,0),('qkv',1,8,40,0),('att',1,8,8,2),
        ('w2',0,5,0,-1),('w3',0,14,0,2),('w4',0,8,0,2),('w4',0,2,8,-1),('att',0,3,0,-1),
        ('wo',0,20,0,-1),('w1',0,5,0,-1),('att',0,7,3,-1),
        ('w2',1,5,0,1),('w3',1,14,0,1),('w4',1,10,0,1),('att',0,3,10,-1),
        ('wo',1,10,0,2),('wo',1,10,10,1),('w1',1,5,0,1),('att',0,3,13,-1),('idle',0,4,0,1)]
assert sum(x[2] for x in STEADY)==192
for r in range(3): assert sum(x[2] for x in STEADY if x[4]==r)==48
```

```python
from common import *
from wload import *
LB=49152
LSCR=3*LB
sNext,sEnd,sPubV,sRep='s62','s63','s64','s65'
def gen_ns(a,kind):
    QK=kind in('qk','v'); NT=2 if QK else 1
    T = kind!='v'; GE = kind in('w1','w3'); LOC = kind in('w2','w3')
    def wnum(t,ks):
        f=t*40+ks
        return 256+4*f if f<64 else 192+4*(f-64)
    def wreg(t,ks): return R(wnum(t,ks),4)
    va=VA(1,192)
    vL16=va.get(); vZ=va.get(); vFA=va.get(); vF=va.get(); vT=va.get(); vRd=va.get(); vSt=va.get(); vO=va.get()
    vTok8=va.get(); vMu=va.get(2); vS=va.get(2)
    acc=[va.get(16,4) for _ in range(NT)]
    cs=[va.get(16,4) for _ in range(NT)]
    NA=4 if QK else 8
    ar=va.get(4*NA,4)
    tmp=va.get(32,4); res=va.get(16,4); pk=va.get(16,4)
    vC=va.get(6,2); dum=va.get(4,4)
    if QK: acc2=[res,va.get(16,4)]; vRn=va.get()
    P={'qk':dict(w='q',nv=192,inp=XIN,fin=ST_X,nf=20,fout=ST_QKV,out=QKV,ob=QKVB),
       'v': dict(w='q',nv=192,inp=XIN,fin=ST_X,nf=20,fout=ST_QKV,out=QKV,ob=QKVB),
       'w1':dict(w='w1',nv=20,inp=X1,fin=ST_X1,nf=20,fout=ST_H,out=HS,ob=SEGB),
       'w2':dict(w='w2',nv=20,inp=HS,fin=ST_H,nf=20,fout=ST_X1P,out=X1P,ob=SEGB),
       'w3':dict(w='w3',nv=54,inp=X1P,fin=ST_X1P,nf=20,fout=ST_G,out=G,ob=GB)}[kind]
    err={'qk':1,'v':2,'w1':3,'w2':4,'w3':5}[kind]
    def sel(dst,arr,add=0): lsel(a,dst,arr,add)
    a.e(f's_mov_b32 s24, s4\ns_mov_b32 s25, s5\ns_mov_b32 s27, 0x20000')
    a.e(f's_cmp_lt_u32 s41, {P["nv"]}\ns_cselect_b32 s26, s6, 0\ns_min_u32 s41, s41, {P["nv"]-1}')
    a.e(f'v_lshlrev_b32 v{vL16}, 4, v0')
    _,K_,N_=WN[P['w']]
    if QK:
        a.e('s_lshr_b32 s42, s41, 6\ns_lshl_b32 s42, s42, 3\ns_add_u32 s42, s42, 16'); wsrd(a,'s42',K_*N_*2)
        a.e('s_and_b32 s42, s41, 63\ns_lshl_b32 s42, s42, 7')
    else:
        wsrd(a,KARG[P['w']],K_*N_*2); a.e('s_lshl_b32 s42, s41, 6')
    load_dense(a,[(wnum(t,ks),'s42',ks*16*N_*2+t*64) for ks in range(40) for t in range(NT)],N_*2,tmp,tmp+1,tmp+2)
    if LOC: local_setup(a,tmp,tmp+1)
    wait_init(a,tmp,tmp+1)
    a.e(f'v_and_b32 v{vTok8}, 31, v0\nv_lshrrev_b32 v{vT}, 5, v0')
    a.e(f'v_mul_u32_u24 v{vSt}, 2560, v{vT}\nv_lshl_add_u32 v{vSt}, v{vTok8}, 3, v{vSt}')
    a.e(f's_lshl_b32 s43, {sWave}, 10')
    if kind!='w2':
        for i in range(4): a.e(f'v_mov_b32 v{ar+i}, 0x3f803f80')
        for t in range(NT):
            for ks in range(40):
                c='0' if ks==0 else vr(cs[t],16)
                A,Bq=(wreg(t,ks),vr(ar,4)) if T else (vr(ar,4),wreg(t,ks))
                a.e(f'v_mfma_f32_32x32x16_bf16 {vr(cs[t],16)}, {A}, {Bq}, {c}')
    for i,x in enumerate((GC0,GC0,GC1,GC1)): a.e(f'v_mov_b32 v{vC+i}, {hex(f2u(x))}')
    a.e(f's_mov_b32 s48, {hex(f2u(1/640.))}\ns_mov_b32 s49, {hex(f2u(1e-5))}\ns_mov_b32 s35, 0')
    pinit(a)
    a.e(f's_mov_b32 {sItem}, 0\ns_mov_b32 {sEnd}, 64')
    init=a.newlabel('ns_init'); a.label(init)
    a.e(f'v_min_u32 v{vFA}, {P["nf"]-1}, v0\nv_lshlrev_b32 v{vFA}, {FSH}, v{vFA}')
    sel('s42',[FLAG(0,P['fin']),FLAG(1,P['fin'])]); a.e(f'v_add_u32 v{vFA}, s42, v{vFA}')
    sel('s37',[FLAG(0,P['fout']),FLAG(1,P['fout'])]); a.e(f's_lshl_b32 s42, s41, {FSH}\ns_add_u32 s37, s37, s42')
    if QK: a.e(f's_lshl_b32 s42, {sRep}, 2\ns_add_u32 s37, s37, s42')
    sel('s66',P['inp']); a.e('s_add_u32 s66, s66, s43')
    if kind=='w2':
        sel('s67',X1); a.e('s_lshl_b32 s42, s41, 11\ns_add_u32 s45, s67, s42\ns_add_u32 s67, s67, s43')
    else: a.e('s_mov_b32 s67, s66')
    sel('s68',P['out'], -SEGB if kind=='w1' else 0)
    if QK: a.e(f's_bfe_u32 s42, s41, 0x10005\ns_mul_i32 s42, s42, {384*KB}\ns_add_u32 s68, s68, s42\ns_lshr_b32 s42, s41, 6\ns_lshl_b32 s42, s42, 17\ns_add_u32 s68, s68, s42\ns_and_b32 s42, s41, 31\ns_lshl_b32 s42, s42, 12\ns_add_u32 s68, s68, s42')
    else: a.e('s_lshl_b32 s42, s41, 11\ns_add_u32 s68, s68, s42')
    if kind=='w1':
        a.e('s_mov_b32 s44, 1\ns_cmp_ge_u32 s41, 5\ns_cselect_b32 s44, -1, s44\ns_cmp_ge_u32 s41, 10\ns_cselect_b32 s44, 2, s44\ns_cmp_ge_u32 s41, 15\ns_cselect_b32 s44, -2, s44')
        a.e(f's_add_u32 s46, s44, 32\nv_add_u32 v{tmp}, s46, v{vTok8}')
        a.e(f'v_lshrrev_b32 v{tmp+1}, 5, v{tmp}\nv_and_b32 v{tmp+2}, 31, v{tmp}')
        a.e(f'v_mul_u32_u24 v{tmp+1}, {SEGB}, v{tmp+1}\nv_lshl_add_u32 v{tmp+1}, v{tmp+2}, 4, v{tmp+1}\nv_lshl_add_u32 v{vO}, v{vT}, 9, v{tmp+1}')
        a.e(f'v_subrev_u32 v{tmp}, s44, v{vTok8}\nv_cmp_lt_u32 vcc, 31, v{tmp}')
        a.e(f's_cmp_gt_i32 s44, 0\ns_cselect_b32 s46, 1, 64\ns_mul_i32 s46, s46, {SEGB}\ns_add_u32 s46, s46, s68')
        for i in range(4): a.e(f'v_mov_b32 v{tmp+4+i}, 0')
        a.e('s_mov_b64 exec, vcc')
        for h in range(2): a.e(f'buffer_store_dwordx4 v[{tmp+4}:{tmp+7}], v{vL16}, {WST}, s46 offen offset:{h*1024} sc1')
        a.e('s_mov_b64 exec, -1')
    if not QK: a.e(f'v_lshlrev_b32 v{vTok8}, 3, v{vTok8}')
    ND=12
    DORD=[0,1,2,10,11,3,4,5,6,7,8,9]
    def pub():
        if LOC: lpublish(a,vZ,'s37',sPubV)
        else:
            publish(a,vZ,None,'s37',sPubV)
            if OPT.get('rr',1) and QK:
                for i in range(4): a.e(f'buffer_load_dwordx4 {vr(dum,4)}, v{vL16}, {WST}, s69 offen offset:{i*1024} sc1')
        a.e(f's_mov_b32 {sPend}, 0')
    def dma_addr(item): a.e(f's_mul_i32 s42, {item}, {SEGB}\ns_add_u32 s32, s66, s42\ns_add_u32 s33, s67, s42')
    def dma1(j):
        a.e(f's_add_u32 s46, s44, {j*4096}\ns_mov_b32 m0, s46\ns_add_u32 s46, {"s33" if j>=10 else "s32"}, {j*4096}')
        a.e(f'buffer_load_dwordx4 v{vL16}, {WS}, s46 offen sc1 lds',tag='dma')
    def dma():
        for j in DORD: dma1(j)
    def set_need(item):
        a.e(f's_add_u32 {sNeed}, {item}, {2 if kind=="w2" else 1}')
        if kind=='w2': a.e(f's_min_u32 {sNeed}, {sNeed}, 64')
    def ready_vcc():
        flag_check(a,vF,sNeed)
        a.e(f's_cselect_b64 vcc, -1, 0\ns_cmp_lt_u32 {sNext}, {sEnd}\ns_cselect_b64 vcc, vcc, 0')
    pollld=f'buffer_load_dword v{vF}, v{vFA}, {WS}, 0 offen sc1'
    strm=a.newlabel('ns_stream')
    if QK: a.e(f's_cmp_eq_u32 {sLayer}, 0'); a.e(f's_cbranch_scc1 {strm}')
    a.e(f's_mov_b32 {sPend}, 0')
    set_need(sItem); dma_addr(sItem)
    poll_block(a,vFA,sNeed,vF,err)
    a.e('s_add_u32 s44, s35, s43'); dma()
    a.e('s_mov_b32 s34, 1')
    top=a.newlabel('ns_top')
    nst=NT*2+(1 if kind=='w2' else 0)
    a.label(top); a.reset_track()
    def stage(cnt):
        if QK:
            l_=a.newlabel('ns_s')
            a.e('s_cmp_eq_u32 s34, 0'); a.e(f's_cbranch_scc1 {l_} ; nopad')
        a.e(f's_waitcnt vmcnt({cnt})')
        if QK: a.label(l_,nopad=True)
        a.e('s_barrier')
    a.e(f'v_add_u32 v{vRd}, s35, v{vL16}')
    a.e(f's_add_u32 {sNext}, {sItem}, 1')
    a.e(f's_mul_i32 s36, {sItem}, {P["ob"]}')
    if kind=='w2':
        a.e('s_add_u32 s46, s45, s36')
        for i in range(2): a.e(f'buffer_load_dwordx4 {vr(res+4*i,4)}, v{vL16}, {WS}, s46 offen offset:{i*1024} sc1')
    XV=2 if kind=='w2' else 0
    a.e('s_add_u32 s36, s36, s68')
    set_need(sNext); dma_addr(sNext)
    a.e(f's_xor_b32 s44, s35, {LB}\ns_add_u32 s44, s44, s43')
    stage(9+XV)
    stamp(a,vT,vZ,0); pt(a,0)
    a.lg=[]
    LA=NA-1
    def rd(p): a.e(f'ds_read_b128 {vr(ar+4*(p%NA),4)}, v{vRd} offset:{p*1024}',tag=('a',p))
    for p in range(LA): rd(p)
    if QK:
        ready_vcc()
        a.e(f's_cmp_eq_u32 s34, 0\ns_cselect_b64 vcc, vcc, 0\ns_and_b32 {sPref}, vcc_lo, 1')
    def cdma(j):
        sk=a.newlabel('ns_d')
        a.e(f's_cbranch_vccz {sk} ; nopad'); dma1(j); a.label(sk,nopad=True)
    def stats_ops():
        o=[f'v_add_u32 v{vT}, s35, v{vSt}']
        for i in range(10): o.append((f'ds_read_b64 {vr(tmp+2*i,2)}, v{vT} offset:{STAT+i*256}','st'))
        o+=['@','@','@']
        o.append(lambda: a.wait_lg('st'))
        for st,n in ((10,10),):
            o+=[f'v_add_f32 v{tmp+i}, v{tmp+i}, v{tmp+10+i}' for i in range(10)]
        o+=[f'v_add_f32 v{tmp+i}, v{tmp+i}, v{tmp+4+i}' for i in range(4)]
        o+=[f'v_add_f32 v{tmp+8}, v{tmp+8}, v{tmp}',f'v_add_f32 v{tmp+9}, v{tmp+9}, v{tmp+1}',f'v_add_f32 v{vS}, v{tmp+8}, v{tmp+2}',f'v_add_f32 v{vS+1}, v{tmp+9}, v{tmp+3}']
        o+=[f'v_mov_b32 v{tmp}, v{vS}',f'v_mov_b32 v{tmp+1}, v{vS+1}','@',f'v_permlane32_swap_b32 v{vS}, v{tmp}',f'v_permlane32_swap_b32 v{vS+1}, v{tmp+1}','@',
            f'v_add_f32 v{vS}, v{vS}, v{tmp}',f'v_add_f32 v{vS+1}, v{vS+1}, v{tmp+1}',f'v_mul_f32 v{vS}, s48, v{vS}',f'v_mul_f32 v{vS+1}, s48, v{vS+1}',
            f'v_fma_f32 v{vS+1}, -v{vS}, v{vS}, v{vS+1}',f'v_max_f32 v{vS+1}, 0, v{vS+1}',f'v_add_f32 v{tmp}, s49, v{vS+1}',f'v_rsq_f32 v{vMu}, v{tmp}','@']
        if kind=='w1':
            o+=[f'v_mul_f32 v{tmp}, v{vMu}, v{vMu}',f'v_mul_f32 v{tmp}, v{tmp}, v{vS+1}',f'v_add_f32 v{tmp}, s49, v{tmp}',f'v_rsq_f32 v{tmp}, v{tmp}','@',f'v_mul_f32 v{vMu}, v{vMu}, v{tmp}']
        o+=[f'v_mul_f32 v{vMu+1}, v{vS}, v{vMu}',f'v_mov_b32 v{vC+4}, v{vMu}',f'v_mov_b32 v{vC+5}, v{vMu}']
        if kind=='v':
            o+=[f's_lshl_b32 s60, {sWave}, 8',f's_add_u32 s60, s60, {LSCR}',f'v_lshlrev_b32 v{vS}, 2, v{vTok8}',f'v_add_u32 v{vS}, s60, v{vS}',
                (f'ds_write_b32 v{vS}, v{vMu}','sw'),(f'ds_write_b32 v{vS}, v{vMu+1} offset:128','sw'),
                f'v_lshrrev_b32 v{vS+1}, 5, v0',f'v_lshlrev_b32 v{vS+1}, 4, v{vS+1}',f'v_add_u32 v{vS+1}, s60, v{vS+1}']
            for g in range(4):
                o+=[(f'ds_read_b128 {vr(tmp+4*g,4)}, v{vS+1} offset:{g*32}','sr'),(f'ds_read_b128 {vr(tmp+16+4*g,4)}, v{vS+1} offset:{128+g*32}','sr')]
            o+=['@','@','@',lambda: a.wait_lg('sr')]
        return o
    def pre_ops(t,d):
        if kind=='w2':
            o=[]
            for i in range(8): o+=[f'v_lshlrev_b32 v{d+2*i}, 16, v{res+i}',f'v_and_b32 v{d+2*i+1}, 0xffff0000, v{res+i}']
            return o+[f'v_fma_f32 v{d+i}, v{d+i}, v{vMu}, -v{vMu+1}' for i in range(16)]
        if T: return [f'v_mul_f32_e64 v{d+i}, -v{vMu+1}, v{cs[t]+i}' for i in range(16)]
        return [f'v_mul_f32_e64 v{d+i}, -v{tmp+16+i}, v{cs[t]}' for i in range(16)]
    def ST(x): return (lambda: lstore(a,x)) if LOC else x+' sc1'
    def epi_ops(t,d):
        x=acc[t]; o=[]
        ov = vO if kind=='w1' else vL16
        for h in range(2):
            R2=range(8*h,8*h+8,2); R1=range(8*h,8*h+8)
            for i in R2:
                if kind=='w2': o.append(f'v_pk_add_f32 {vr(x+i,2)}, {vr(x+i,2)}, {vr(d+i,2)}')
                else: o.append(f'v_pk_fma_f32 {vr(x+i,2)}, {vr(x+i,2)}, {vr(vC+4,2) if T else vr(tmp+i,2)}, {vr(d+i,2)}')
            if GE:
                o+=[f'v_pk_mul_f32 {vr(d+i,2)}, {vr(x+i,2)}, {vr(x+i,2)}' for i in R2]
                o+=[f'v_pk_fma_f32 {vr(d+i,2)}, {vr(d+i,2)}, {vr(vC+2,2)}, {vr(vC,2)}' for i in R2]
                o+=[f'v_pk_mul_f32 {vr(d+i,2)}, {vr(d+i,2)}, {vr(x+i,2)}' for i in R2]
                o+=[f'v_exp_f32 v{d+i}, v{d+i}' for i in R1]
                o+=[f'v_pk_add_f32 {vr(d+i,2)}, {vr(d+i,2)}, 1.0 op_sel_hi:[1,0]' for i in R2]
                o+=[f'v_rcp_f32 v{d+i}, v{d+i}' for i in R1]
                o+=[f'v_pk_mul_f32 {vr(x+i,2)}, {vr(x+i,2)}, {vr(d+i,2)}' for i in R2]
            o+=[f'v_cvt_pk_bf16_f32 v{pk+8*t+4*h+i}, v{x+8*h+2*i}, v{x+8*h+2*i+1}' for i in range(4)]
            o.append(ST(f'buffer_store_dwordx4 {vr(pk+8*t+4*h,4)}, v{ov}, {WST}, s36 offen offset:{t*2048+h*1024}'))
        if kind=='w2':
            from ks import fast_stats
            b=Asm(); fast_stats(b,x,d,d+2); o+=[l[1] for l in b.lines]
            o+=[f's_mul_i32 s42, s41, {2048-256}',f's_sub_u32 s42, s36, s42',f's_add_u32 s42, s42, {STAT}',
                ST(f'buffer_store_dwordx2 {vr(d,2)}, v{vTok8}, {WST}, s42 offen')]
        return o
    def emit(x):
        if callable(x): x()
        elif isinstance(x,tuple): a.e(x[0],tag=x[1])
        elif x!='@': a.e(x)
    D=[tmp,tmp+16] if T else [res,cs[0]+0]
    if not T: D=[res,pk]
    fq=[]
    S2,S3=12-LA,28-LA
    W1=0; PUBK=12; W2=28
    for p in range(40):
        if p==S2:
            stage(3+XV); pt(a,1)
            fq+=stats_ops()
            if kind!='w2': fq+=pre_ops(0,D[0])+(pre_ops(1,D[1]) if (T and NT==2) else [])
        if p==S3:
            stage(0); pt(a,2)
            if kind=='w2': fq+=pre_ops(0,D[0])
            if not QK: a.e(pollld)
        if p+LA<40: rd(p+LA)
        if QK: a.wait_lg(('a',p))
        elif p%2==0: a.wait_lg(('a',p+1))
        for t in range(NT):
            c='0' if p==0 else vr(acc[t],16)
            A,Bq=(wreg(t,p),vr(ar+4*(p%NA),4)) if T else (vr(ar+4*(p%NA),4),wreg(t,p))
            a.e(f'v_mfma_f32_32x32x16_bf16 {vr(acc[t],16)}, {A}, {Bq}, {c}')
            bud=OPT.get('bud',3)
            if QK and t==0:
                for Wn in (W1,W2):
                    if Wn<=p<Wn+ND: cdma(DORD[p-Wn]); bud=1
            while fq and bud>0:
                x=fq.pop(0); emit(x); bud = 0 if x=='@' else bud-1
        if QK and p==PUBK:
            np_=a.newlabel('ns_np'); w0=a.newlabel('ns_w0')
            a.e(f's_cmp_eq_u32 {sPend}, 0'); a.e(f's_cbranch_scc1 {np_} ; nopad')
            a.e(f's_waitcnt vmcnt({ND})')
            a.e(f's_cbranch_vccnz {w0} ; nopad')
            a.e('s_waitcnt vmcnt(0)')
            a.label(w0,nopad=True)
            pub()
            a.label(np_,nopad=True)
            a.e(pollld)
        if QK and p==W2-1:
            sk=a.newlabel('ns_sk')
            a.e(f's_mov_b64 vcc, 0\ns_cmp_lg_u32 {sPref}, 0'); a.e(f's_cbranch_scc1 {sk} ; nopad')
            a.e('s_waitcnt vmcnt(0)')
            ready_vcc()
            a.e(f's_and_b32 {sPref}, vcc_lo, 1')
            a.label(sk,nopad=True)
    print(kind,'fillers left',len(fq))
    for x in fq: emit(x)
    stamp(a,vT,vZ,1); pt(a,3)
    if QK: a.e(pollld)
    for t in range(NT):
        if t==1 and not T:
            for x in pre_ops(1,res): emit(x)
        for x in epi_ops(t,D[t] if T else res): emit(x)
    pt(a,4)
    a.e(f's_waitcnt vmcnt({nst})')
    ready_vcc()
    a.e(f's_add_u32 {sPubV}, {sItem}, 1\ns_mov_b32 {sItem}, {sNext}\ns_mov_b32 s69, s36\ns_xor_b32 s35, s35, {LB}\ns_mov_b32 {sPend}, 1\ns_mov_b32 s34, 0')
    pt(a,5,1); pacc(a,6)
    if QK:
        if OPT['ts']==3: a.e(f's_add_u32 s95, s95, {sPref}')
        a.e(f's_cmp_lg_u32 {sPref}, 0'); a.e(f's_cbranch_scc1 {top}')
        a.e('s_mov_b32 s34, 1')
    blk=a.newlabel('ns_blk')
    a.e(f's_cbranch_vccz {blk}')
    for j in DORD[:4]: dma1(j)
    a.e('s_waitcnt vmcnt(4)')
    pt(a,18,1)
    pub()
    for j in DORD[4:]: dma1(j)
    a.e(f's_branch {top}')
    a.label(blk)
    a.e('s_waitcnt vmcnt(0)')
    pt(a,18,1)
    pub()
    fin=a.newlabel('ns_fin')
    a.e(f's_cmp_ge_u32 {sItem}, {sEnd}'); a.e(f's_cbranch_scc1 {fin}')
    poll_block(a,vFA,sNeed,vF,err,sleep=1 if QK else OPT.get('bsl',1))
    pt(a,19)
    dma()
    a.e(f's_branch {top}')
    a.label(fin)
    pdump(a,vT)
    a.e('s_branch L_end')
    a.reset_track()
    if not QK: return
    a.label(strm); a.reset_track()
    a.e(f's_mov_b32 {sItem}, {sRep}\ns_cmp_eq_u32 {sRep}, 0\ns_cselect_b32 {sEnd}, {PHB}, 64\ns_cmp_eq_u32 {sRep}, 2\ns_cselect_b32 {sEnd}, {PHA}, {sEnd}')
    def nxt(d,i): a.e(f's_cmp_lt_u32 {i}, {PHB-1}\ns_cselect_b32 {d}, 2, 1\ns_cmp_lt_u32 {i}, {PHA}\ns_cselect_b32 {d}, 3, {d}\ns_add_u32 {d}, {d}, {i}')
    dma_addr(sItem); a.e('s_mov_b32 s44, s43\ns_mov_b32 s35, 0'); dma()
    a.e('s_waitcnt vmcnt(0)'); a.e('s_barrier')
    a.e(f'v_mov_b32 v{vRn}, v{vL16}\ns_mov_b32 s61, s26\ns_mov_b32 s26, 0')
    a.reset_track()
    def rds(p,v): a.e(f'ds_read_b128 {vr(ar+4*(p%4),4)}, v{v} offset:{(p%40)*1024}',tag=('a',p))
    for p in range(3): rds(p,vRn)
    def sepi(X):
        o=[]
        for t in range(2):
            for h in range(2):
                for i in range(8*h,8*h+8):
                    q=dum+i%4
                    if T: o+=[f'v_mul_f32_e64 v{q}, -v{vMu+1}, v{cs[t]+i}',f'v_fma_f32 v{X[t]+i}, v{X[t]+i}, v{vMu}, v{q}']
                    else: o+=[f'v_mul_f32_e64 v{q}, -v{tmp+16+i}, v{cs[t]}',f'v_fma_f32 v{X[t]+i}, v{X[t]+i}, v{tmp+i}, v{q}']
                o+=[f'v_cvt_pk_bf16_f32 v{pk+8*t+4*h+i}, v{X[t]+8*h+2*i}, v{X[t]+8*h+2*i+1}' for i in range(4)]
                o.append(f'buffer_store_dwordx4 {vr(pk+8*t+4*h,4)}, v{vL16}, {WST}, s36 offen offset:{t*2048+h*1024} sc1')
        r=[];
        for x in o: r.append(x)
        for i in range(len(r)-2):
            if r[i].startswith('v_fma') and r[i+1].startswith('v_mul') and (i==0 or r[i-1].startswith('v_mul')) and False: pass
        return r
    stop=a.newlabel('ns_stop'); sl=a.newlabel('ns_sl'); a.label(sl,nopad=True)
    ends=[]
    for u in range(2):
        X,Y=(acc,acc2) if u==0 else (acc2,acc)
        a.lg=[('a',0),('a',1),('a',2)]
        stamp(a,vT,vZ,0)
        sc=[f'v_mov_b32 v{vRd}, v{vRn}']
        a.e(sc[0])
        nxt(sNext,sItem)
        a.e(f's_min_u32 s60, {sNext}, 63'); dma_addr('s60')
        a.e(f's_add_u32 s34, s35, {LB}\ns_cmp_eq_u32 s34, {3*LB}\ns_cselect_b32 s34, 0, s34\ns_add_u32 s44, s34, s43\nv_add_u32 v{vRn}, s34, v{vL16}')
        fq=['@','@','@']+sepi(Y)+stats_ops()
        dq=list(DORD)
        for p in range(40):
            if p==37:
                assert not fq and not dq, (len(fq),len(dq))
                a.e('s_waitcnt vmcnt(0)'); a.e('s_barrier')
                publish(a,vZ,None,'s37',sPubV)
            rds(p+3, vRd if p+3<40 else vRn)
            a.wait_lg(('a',p))
            for t in range(2):
                c='0' if p==0 else vr(X[t],16)
                A,Bq=(wreg(t,p),vr(ar+4*(p%4),4)) if T else (vr(ar+4*(p%4),4),wreg(t,p))
                a.e(f'v_mfma_f32_32x32x16_bf16 {vr(X[t],16)}, {A}, {Bq}, {c}')
                bud=OPT.get('sbud',3)
                if t==0 and p%2==0 and dq: dma1(dq.pop(0)); bud=0
                while fq and bud>0:
                    x=fq.pop(0); emit(x); bud = 0 if x=='@' else bud-1
        stamp(a,vT,vZ,1)
        a.e(f's_mul_i32 s36, {sItem}, {P["ob"]}\ns_add_u32 s36, s36, s68\ns_add_u32 {sPubV}, {sItem}, 1\ns_mov_b32 {sItem}, {sNext}\ns_mov_b32 s35, s34\ns_mov_b32 s26, s61')
        a.e(f's_cmp_ge_u32 {sItem}, {sEnd}')
        e=a.newlabel('ns_se'); ends.append((e,X))
        a.e(f's_cbranch_scc1 {e} ; nopad')
    a.e(f's_branch {sl} ; nopad')
    for e,X in ends:
        a.label(e); a.e('s_nop 7\ns_nop 3')
        for x in sepi(X): emit(x)
        a.e(f's_branch {stop}')
    a.label(stop)
    a.e('s_waitcnt vmcnt(0) lgkmcnt(0)')
    publish(a,vZ,None,'s37',sPubV)
    a.e(f's_cmp_lg_u32 {sRep}, 0'); a.e('s_cbranch_scc1 L_steady')
    a.e('s_barrier')
    a.e(f's_mov_b32 {sLayer}, 1\ns_mov_b32 {sItem}, 0\ns_mov_b32 {sEnd}, 64\ns_mov_b32 s35, 0')
    a.e(f's_branch {init}')
    a.reset_track()
```

```python
from asmb import *
from layout import *
KARG={'x':0,'mem0':8,'q':16,'k':24,'v':32,'o':40,'w1':64,'w2':72,'w3':80,'w4':88,'out':96,'dbg':104,'ws':112}
def magic(d): return (2**32+d-1)//d
def sdiv(a,q,r,x,d,tmp):
    a.e(f's_mul_hi_u32 {q}, {x}, {hex(magic(d))}')
    a.e(f's_mul_i32 {tmp}, {q}, {d}')
    a.e(f's_sub_u32 {r}, {x}, {tmp}')
def srd(a,b,ptr,nbytes):
    a.e(f's_mov_b32 s{b}, s{ptr}\ns_and_b32 s{b+1}, s{ptr+1}, 0xffff\ns_mov_b32 s{b+2}, {hex(nbytes)}\ns_mov_b32 s{b+3}, 0x20000')

def gen_pre(a,name):
    a.raw(f'.globl {name}\n.p2align 8\n.type {name},@function')
    a.label(name)
    a.e('s_load_dwordx2 s[20:21], s[0:1], 112')
    a.e('v_lshrrev_b32 v1, 6, v0\nv_and_b32 v0, 63, v0')
    a.e('v_readfirstlane_b32 s3, v1')
    a.e('s_lshl_b32 s2, s2, 2\ns_add_u32 s2, s2, s3')
    a.e('v_lshlrev_b32 v2, 4, v0')
    a.e('s_waitcnt lgkmcnt(0)')
    srd(a,4,20,256*MB)
    end=a.newlabel('pre_end')
    def gather(rows,rowbytes):
        for j,r in enumerate(rows):
            a.e(f's_add_u32 s26, s24, {r*rowbytes}')
            a.e(f'buffer_load_ushort v{8+j}, v3, s[8:11], s26 offen')
        a.e('s_waitcnt vmcnt(0)')
        for j in range(4):
            a.e(f'v_lshl_or_b32 v{16+j}, v{9+2*j}, 16, v{8+2*j}')
        a.e('buffer_store_dwordx4 v[16:19], v2, s[4:7], s25 offen')
        a.e(f's_branch {end}')
    t0=0
    n=64*20
    nxt=a.newlabel('pre_n')
    a.e(f's_cmp_ge_u32 s2, {t0+n}'); a.e(f's_cbranch_scc1 {nxt}')
    a.e('s_load_dwordx2 s[22:23], s[0:1], 0')
    a.e(f's_sub_u32 s27, s2, {t0}')
    sdiv(a,'s28','s29','s27',20,'s30')
    a.e(f's_mul_i32 s24, s28, {32*1280}\ns_lshl_b32 s30, s29, 6\ns_add_u32 s24, s24, s30')
    a.e('v_lshrrev_b32 v4, 5, v0\nv_and_b32 v5, 31, v0\nv_mul_u32_u24 v3, 1280, v5\nv_lshl_add_u32 v3, v4, 3, v3')
    a.e('s_waitcnt lgkmcnt(0)')
    srd(a,8,22,2048*640*2)
    for i in range(4):
        a.e(f'buffer_load_dwordx2 v[{8+2*i}:{9+2*i}], v3, s[8:11], s24 offen offset:{16*i}')
    a.e(f's_mul_i32 s25, s28, {SEGB}\ns_add_u32 s25, s25, {XIN[0]}')
    a.e('s_lshl_b32 s30, s29, 11\ns_add_u32 s26, s25, s30')
    a.e('s_waitcnt vmcnt(0)')
    a.e('buffer_store_dwordx4 v[8:11], v2, s[4:7], s26 offen\nbuffer_store_dwordx4 v[12:15], v2, s[4:7], s26 offen offset:1024')
    a.e('v_mov_b32 v20, 0\nv_mov_b32 v21, 0')
    for i in range(8):
        a.e(f'v_lshlrev_b32 v16, 16, v{8+i}\nv_and_b32 v17, 0xffff0000, v{8+i}')
        a.e('v_add_f32 v20, v20, v16\nv_fmac_f32 v21, v16, v16\nv_add_f32 v20, v20, v17\nv_fmac_f32 v21, v17, v17')
    a.e('v_mov_b32 v22, v20\nv_mov_b32 v23, v21')
    a.e('v_permlane32_swap_b32 v20, v22\nv_permlane32_swap_b32 v21, v23')
    a.e('v_add_f32 v20, v20, v22\nv_add_f32 v21, v21, v23')
    a.e('v_lshlrev_b32 v5, 3, v5')
    a.e(f's_lshl_b32 s30, s29, 8\ns_add_u32 s26, s25, s30\ns_add_u32 s26, s26, {STAT}')
    a.e('buffer_store_dwordx2 v[20:21], v5, s[4:7], s26 offen')
    a.e(f's_branch {end}')
    a.label(nxt); t0+=n
    n=640
    nxt=a.newlabel('pre_n')
    a.e(f's_cmp_ge_u32 s2, {t0+n}'); a.e(f's_cbranch_scc1 {nxt}')
    a.e(f's_sub_u32 s27, s2, {t0}')
    a.e('s_lshr_b32 s28, s27, 5\ns_cmp_eq_u32 s28, 2\ns_cselect_b32 s28, 64, 0\ns_lshl_b32 s25, s27, 10')
    a.e('v_mov_b32 v8, s28\nv_mov_b32 v9, s28\nv_mov_b32 v10, s28\nv_mov_b32 v11, s28')
    a.e('buffer_store_dwordx4 v[8:11], v2, s[4:7], s25 offen')
    a.e(f's_branch {end}')
    a.label(nxt); t0+=n
    n=2048
    a.e(f's_cmp_ge_u32 s2, {t0+n}'); a.e(f's_cbranch_scc1 {end}')
    a.e(f's_sub_u32 s27, s2, {t0}\ns_lshl_b32 s25, s27, 10\ns_add_u32 s25, s25, {RING}')
    a.e('v_mov_b32 v8, -1\nv_mov_b32 v9, -1\nv_mov_b32 v10, -1\nv_mov_b32 v11, -1')
    a.e('buffer_store_dwordx4 v[8:11], v2, s[4:7], s25 offen')
    t0+=n
    a.label(end)
    a.e('s_endpgm')
    a.reset_track()
    return (t0+3)//4
```

```python
from common import *
WSRC='s[16:19]'
def wsrd(a,karg_off,nbytes):
    a.e(f's_load_dwordx2 s[20:21], s[0:1], {karg_off}')
    a.e('s_waitcnt lgkmcnt(0)')
    srd(a,16,20,nbytes)
def load_dense(a,frags,rowbytes,vS,vT,vX,D=36):
    a.e(f'v_lshrrev_b32 v{vX}, 2, v0\nv_mul_u32_u24 v{vS}, {rowbytes}, v{vX}\nv_and_b32 v{vX}, 3, v0\nv_lshl_add_u32 v{vS}, v{vX}, 4, v{vS}')
    a.e(f'v_lshlrev_b32 v{vT}, 3, v{vX}\nv_bfe_u32 v{vX}, v0, 4, 1\nv_lshl_add_u32 v{vT}, v{vX}, 5, v{vT}\nv_bfe_u32 v{vX}, v0, 2, 2\nv_lshl_add_u32 v{vT}, v{vX}, 6, v{vT}\nv_lshrrev_b32 v{vX}, 5, v0\nv_lshl_add_u32 v{vT}, v{vX}, 8, v{vT}')
    a.e(f's_mul_i32 s22, {sWave}, {40*KB}\nv_add_u32 v{vT}, s22, v{vT}')
    a.reset_track()
    def issue(i):
        r,sb,off=frags[i]
        a.e(f's_add_u32 s23, s22, {(i%D)*1024}\ns_mov_b32 m0, s23')
        if callable(off): off('s23'); a.e(f's_add_u32 s23, s23, {sb}')
        else: a.e(f's_add_u32 s23, {sb}, {off}')
        a.e(f'buffer_load_dwordx4 v{vS}, {WSRC}, s23 offen lds',tag=('d',i))
    n=len(frags)
    for i in range(min(D,n)): issue(i)
    LAG=3
    for i in range(n):
        a.wait_vm(('d',i))
        r=frags[i][0]
        a.e(f'ds_read_b64_tr_b16 {R(r,2)}, v{vT} offset:{(i%D)*1024}\nds_read_b64_tr_b16 {R(r+2,2)}, v{vT} offset:{(i%D)*1024+512}',tag=('t',i))
        j=i-LAG
        if j>=0 and j+D<n:
            a.wait_lg(('t',j)); issue(j+D)
    a.wait_lg()
    a.e('s_barrier')
    a.reset_track()
```

```python
import sys
from common import *
from pre import gen_pre
from ns import gen_ns
NAME='interleave_layers__memory_aug_recurrent_mem_tr__mixer_s_mlp__prompt'
LDS_BYTES=160*1024
def kd(name,vgpr,acc,sgpr=102):
    return f'''.amdhsa_kernel {name}
  .amdhsa_next_free_vgpr {vgpr}
  .amdhsa_next_free_sgpr {sgpr}
  .amdhsa_accum_offset {acc}
  .amdhsa_group_segment_fixed_size 0
  .amdhsa_kernarg_size 120
  .amdhsa_user_sgpr_count 2
  .amdhsa_user_sgpr_kernarg_segment_ptr 1
  .amdhsa_system_sgpr_workgroup_id_x 1
  .amdhsa_float_denorm_mode_32 3
.end_amdhsa_kernel
'''
WSTART={'qkv':0,'wo':48,'att':68,'w1':76,'w2':79,'w3':82,'w4':89}
def gen_main(a,name,roles):
    a.label('R_chain')
    if 'chain' in roles:
        from chain import gen_chain
        gen_chain(a)
    else: a.e('s_branch L_end')
    a.label('L_fail')
    a.e(f's_lshl_b32 s42, {sRole}, 8\ns_or_b32 s42, s42, {sErr}\ns_lshl_b32 s43, {sItem}, 16\ns_or_b32 s42, s42, s43')
    a.e(f's_lshl_b32 s43, {sErr}, 2')
    a.e('s_mov_b64 exec, -1')
    a.e('v_mov_b32 v1, s42\nv_mov_b32 v2, 0')
    a.e(f'buffer_store_dword v1, v2, {DBG}, s43 offen')
    a.label('L_end')
    a.e('s_endpgm')
    a.raw(f'.globl {name}\n.p2align 8\n.type {name},@function')
    a.label(name)
    a.e('s_cmp_ge_u32 s2, 256'); a.e('s_cbranch_scc1 L_end')
    a.e('s_load_dwordx2 s[20:21], s[0:1], 112\ns_load_dwordx2 s[22:23], s[0:1], 96\ns_load_dwordx2 s[24:25], s[0:1], 104\ns_load_dwordx2 s[26:27], s[0:1], 8')
    a.e('v_lshrrev_b32 v1, 6, v0\nv_and_b32 v0, 63, v0')
    a.e(f'v_readfirstlane_b32 {sWave}, v1')
    a.e('s_getreg_b32 s41, hwreg(HW_REG_XCC_ID)\ns_and_b32 s41, s41, 7')
    a.e('s_waitcnt lgkmcnt(0)')
    srd(a,4,20,256*MB); srd(a,8,22,2048*640*2); srd(a,12,24,256); srd(a,16,26,8*640*2)
    a.e(f's_mov_b32 {sItem}, 0')
    cl=a.newlabel('claimed'); got=a.newlabel('got')
    a.e(f'v_mov_b32 v4, {LDS_BYTES-16}')
    a.e(f's_cmp_lg_u32 {sWave}, 0'); a.e(f's_cbranch_scc1 {cl}')
    a.e(f's_lshl_b32 s42, s41, 7\ns_add_u32 s42, s42, {CLAIM}')
    a.e('v_mov_b32 v2, 1\nv_mov_b32 v3, 0')
    a.e('s_mov_b64 exec, 1')
    a.e(f'buffer_atomic_add v2, v3, {WS}, s42 offen sc0 sc1')
    a.e('s_waitcnt vmcnt(0)')
    a.e('s_mov_b64 exec, -1')
    a.e('v_readfirstlane_b32 s43, v2')
    a.e('s_lshl_b32 s44, s41, 5\ns_add_u32 s44, s44, s43')
    a.e('s_cmp_lt_u32 s43, 32'); a.e(f's_cbranch_scc1 {got}')
    a.e('v_mov_b32 v2, 1')
    a.e('s_mov_b64 exec, 1')
    a.e(f's_mov_b32 s42, {CLAIM+8*128}')
    a.e(f'buffer_atomic_add v2, v3, {WS}, s42 offen sc0 sc1')
    a.e('s_waitcnt vmcnt(0)')
    a.e('s_mov_b64 exec, -1')
    a.e('v_readfirstlane_b32 s43, v2')
    wait_all_registered(a,2,3)
    a.e('s_mov_b32 s44, 255')
    for x in range(8):
        a.e(f's_min_u32 s45, s{50+x}, 32\ns_sub_u32 s46, 32, s45\ns_add_u32 s45, s45, s43\ns_add_u32 s45, s45, {32*x}')
        a.e('s_cmp_lt_u32 s43, s46\ns_cselect_b32 s44, s45, s44\ns_sub_u32 s43, s43, s46')
    a.label(got)
    a.e('v_mov_b32 v2, s44')
    a.e('ds_write_b32 v4, v2')
    a.e('s_waitcnt lgkmcnt(0)')
    a.label(cl)
    a.e('s_barrier')
    a.e('ds_read_b32 v2, v4')
    a.e('s_waitcnt lgkmcnt(0)')
    a.e(f'v_readfirstlane_b32 {sRole}, v2')
    a.e('s_barrier')
    a.reset_track()
    stamp(a,2,None,7)
    a.e(f's_cmp_lt_u32 {sRole}, 32'); a.e('s_cbranch_scc1 R_chain')
    w1l=a.newlabel('wk')
    a.e(f's_cmp_ge_u32 {sRole}, 64'); a.e(f's_cbranch_scc1 {w1l}')
    a.e(f'v_mov_b32 v2, {FLAG(0,ST_PX)}')
    poll_block(a,2,1,3,14,sleep=8)
    a.e('s_branch R_chain')
    a.label(w1l)
    a.e(f's_sub_u32 s42, {sRole}, 64\ns_mov_b32 {sLayer}, 0')
    lo=0; cnt=[0,0,0]
    for nm,L,n,base,rep in STEADY:
        if rep<0: a.e(f's_cmp_lt_u32 s42, {lo+n}'); a.e('s_cbranch_scc1 L_steady')
        else:
            b=base if rep==0 else cnt[rep]; cnt[rep]+=n
            a.e(f's_mov_b32 s43, {b-lo}\ns_mov_b32 s65, {rep}\ns_cmp_lt_u32 s42, {lo+n}'); a.e('s_cbranch_scc1 P1_go')
        lo+=n
    a.label('P1_go')
    a.e(f's_add_u32 s42, s42, s43\ns_lshl_b32 s41, s42, 2\ns_add_u32 s41, s41, {sWave}')
    a.e('s_cmp_ge_u32 s42, 32'); a.e('s_cbranch_scc1 R_v')
    gen_ns(a,'qk')
    a.label('R_v'); gen_ns(a,'v')
    a.label('L_steady')
    a.e('s_barrier')
    stamp(a,2,None,6,'0')
    a.e(f's_sub_u32 s42, {sRole}, 64')
    lo=0
    for nm,L,n,base,rep in STEADY:
        tgt='L_end' if (nm in('idle','qkv') or nm not in roles) else f'R_{nm}'
        a.e(f's_mov_b32 s43, {base-lo}\ns_mov_b32 {sLayer}, {L}\ns_cmp_lt_u32 s42, {lo+n}'); a.e(f's_cbranch_scc1 {tgt}')
        lo+=n
    a.e('s_branch L_end')
    for nm in ('wo','att','w1','w2','w3','w4'):
        if nm not in roles: continue
        a.label(f'R_{nm}')
        a.e('s_add_u32 s42, s42, s43')
        if nm in('w1','w2','w3'):
            a.e(f's_lshl_b32 s41, s42, 2\ns_add_u32 s41, s41, {sWave}')
            gen_ns(a,nm); flush_ool(a)
        elif nm=='att':
            from att import gen_att
            gen_att(a)
        else:
            from ks import gen_ks
            gen_ks(a,nm); flush_ool(a)
def wait_all_registered(a,vF,vA,stop_slot=None):
    L=a.newlabel('reg'); D=a.newlabel('regd')
    a.e(f'v_and_b32 v{vA}, 7, v0\nv_lshlrev_b32 v{vA}, 7, v{vA}\nv_add_u32 v{vA}, {CLAIM}, v{vA}')
    a.e(f's_mov_b32 {sCnt}, 0')
    a.label(L)
    a.e(f'buffer_load_dword v{vF}, v{vA}, {WS}, 0 offen sc1')
    a.e('s_waitcnt vmcnt(0)')
    for x in range(8): a.e(f'v_readlane_b32 s{50+x}, v{vF}, {x}')
    if stop_slot:
        a.e(f'v_readlane_b32 s58, v{vF}, {stop_slot}')
        a.e('s_cmp_ge_u32 s58, 32'); a.e(f's_cbranch_scc1 {D}')
    a.e('s_add_u32 s59, s50, s51')
    for x in range(2,8): a.e(f's_add_u32 s59, s59, s{50+x}')
    a.e('s_cmp_ge_u32 s59, 256'); a.e(f's_cbranch_scc1 {D}')
    a.e('s_sleep 2')
    a.e(f's_add_u32 {sCnt}, {sCnt}, 1\ns_cmp_lt_u32 {sCnt}, {POLL_LIMIT}'); a.e(f's_cbranch_scc1 {L}')
    a.e(f's_mov_b32 {sErr}, 15'); a.e('s_branch L_fail')
    a.label(D); a.vm=[]
import common; common.wait_all_registered=wait_all_registered
def build(roles,path):
    a=Asm()
    gen_main(a,NAME+'_kernel',roles)
    npre=gen_pre(a,'pre_kernel')
    hdr=open('cdna_kernels/'+NAME+'.s.ref').read().split('; Override')[0]
    s=hdr+f'; @launch kernel=pre_kernel grid=({npre},1,1) block=(256,1,1) lds=0\n; @launch kernel={NAME}_kernel grid=(256,1,1) block=(256,1,1) lds={LDS_BYTES}\n'
    s+='.amdgcn_target "amdgcn-amd-amdhsa--gfx950"\n.text\n'+a.text()
    s+='.section .rodata,"a"\n.p2align 6\n'+kd('pre_kernel',32,32)+'.p2align 6\n'+kd(NAME+'_kernel',512,256)
    open(path,'w').write(s)
    print('wrote',path,len(s),'bytes')
if __name__=='__main__':
    roles=sys.argv[1].split(',')
    for o in sys.argv[3:]:
        k,v=o.split('='); OPT[k]=int(v)
    OPT['roles']=roles
    build(roles,sys.argv[2])
```

```python
from asmb import *
from layout import *
from pre import srd, sdiv, KARG
import struct
def f2u(x): return struct.unpack('<I',struct.pack('<f',x))[0]
WS='s[4:7]'; OUT='s[8:11]'; DBG='s[12:15]'; MEM0='s[16:19]'; WST='s[24:27]'
sRole,sWave='s2','s3'
sItem,sPref,sPend,sNeed='s28','s29','s30','s31'
sCnt,sLayer,sErr='s38','s39','s40'
POLL_LIMIT=20000
OPT={'ts':False}
class VA:
    def __init__(self,start=1,end=256): self.n=start; self.end=end
    def get(self,n=1,al=None):
        al=al or (2 if n>=2 else 1)
        self.n=(self.n+al-1)//al*al
        r=self.n; self.n+=n
        assert self.n<=self.end, 'out of vgprs'
        return r
def flag_check(a,vF,need,bias=None):
    if bias:
        a.e(f'v_add_u32 v{bias[1]}, v{bias[0]}, v{vF}'); vF=bias[1]
    a.e(f'v_cmp_le_u32 vcc, {need}, v{vF}')
    a.e('s_cmp_eq_u64 vcc, -1')
def poll_block(a,vAddr,need,vF,err,sleep=1,bias=None,soff='0',srdn=WS):
    L=a.newlabel('poll'); D=a.newlabel('polld')
    a.e(f's_mov_b32 {sCnt}, 0')
    a.label(L)
    a.e(f'buffer_load_dword v{vF}, v{vAddr}, {srdn}, {soff} offen sc1')
    a.e('s_waitcnt vmcnt(0)')
    flag_check(a,vF,need,bias)
    a.e(f's_cbranch_scc1 {D}')
    if sleep: a.e(f's_sleep {OPT.get("sleep",4) if sleep==1 else sleep}')
    a.e(f's_add_u32 {sCnt}, {sCnt}, 1\ns_cmp_lt_u32 {sCnt}, {POLL_LIMIT}')
    a.e(f's_cbranch_scc1 {L}')
    a.e(f's_mov_b32 {sErr}, {err}')
    a.e('s_branch L_fail')
    a.label(D)
    a.vm=[]
def publish(a,vT,vZ,sOff,val,srdn=WST):
    a.e(f'v_mov_b32 v{vT}, {val}')
    a.e('s_mov_b64 exec, 1')
    a.e(f'buffer_store_dword v{vT}, off, {srdn}, {sOff} sc1')
    a.e('s_mov_b64 exec, -1')
def stamp(a,vT,vZ,slot,item=sItem):
    if OPT['ts'] not in (1,2): return
    a.e('s_memrealtime s[98:99]' if OPT['ts']==1 else 's_memtime s[98:99]')
    a.e(f's_lshl_b32 s97, {sRole}, 2\ns_add_u32 s97, s97, {sWave}\ns_lshl_b32 s97, s97, 6\ns_add_u32 s97, s97, {item}\ns_lshl_b32 s97, s97, 5\ns_add_u32 s97, s97, {TSB+slot*4}')
    a.e('s_waitcnt lgkmcnt(0)'); a.lg=[]
    a.e(f'v_mov_b32 v{vT}, s98')
    a.e('s_mov_b64 exec, 1')
    a.e(f'buffer_store_dword v{vT}, off, {WS}, s97')
    a.e('s_mov_b64 exec, -1')
TSB=250*MB
assert WS_END<=TSB
def cvt_pack(a,dst,src,n):
    for i in range(n//2):
        a.e(f'v_cvt_pk_bf16_f32 v{dst+i}, v{src+2*i}, v{src+2*i+1}')
GC0=-2*0.7978845608028654*1.4426950408889634
GC1=GC0*0.044715
def gelu(a,x,n,t,sC0,sC1):
    for i in range(n): a.e(f'v_mul_f32 v{t+i}, v{x+i}, v{x+i}')
    for i in range(n): a.e(f'v_fma_f32 v{t+i}, v{t+i}, {sC1}, {sC0}')
    for i in range(n): a.e(f'v_mul_f32 v{t+i}, v{t+i}, v{x+i}')
    for i in range(n): a.e(f'v_exp_f32 v{t+i}, v{t+i}')
    for i in range(n): a.e(f'v_add_f32 v{t+i}, 1.0, v{t+i}')
    for i in range(n): a.e(f'v_rcp_f32 v{t+i}, v{t+i}')
    for i in range(n): a.e(f'v_mul_f32 v{x+i}, v{x+i}, v{t+i}')
def tile_stats(a,x,s0,t0):
    a.e(f'v_add_f32 v{s0}, v{x}, v{x+1}\nv_mul_f32 v{s0+1}, v{x}, v{x}\nv_fmac_f32 v{s0+1}, v{x+1}, v{x+1}')
    for i in range(2,16):
        a.e(f'v_add_f32 v{s0}, v{s0}, v{x+i}\nv_fmac_f32 v{s0+1}, v{x+i}, v{x+i}')
    a.e(f'v_mov_b32 v{t0}, v{s0}\nv_mov_b32 v{t0+1}, v{s0+1}')
    a.e(f'v_permlane32_swap_b32 v{s0}, v{t0}\nv_permlane32_swap_b32 v{s0+1}, v{t0+1}')
    a.e(f'v_add_f32 v{s0}, v{s0}, v{t0}\nv_add_f32 v{s0+1}, v{s0+1}, v{t0+1}')

def lsel(a,dst,arr,add=0):
    a.e(f's_mul_i32 {dst}, {sLayer}, {hex(arr[1]-arr[0])}\ns_add_u32 {dst}, {dst}, {hex(arr[0]+add)}')

PACC=[50,51,52,53,54,55,56,57,58,100,94,95]
def pinit(a):
    if OPT['ts']==4:
        for k in range(12): a.e(f's_mov_b32 s{70+2*k}, 0')
    if OPT['ts']!=3: return
    for r in PACC: a.e(f's_mov_b32 s{r}, 0')
    a.e('s_mov_b32 s96, 0')
def pt(a,k,d=0):
    if OPT['ts']==3 and k<12: a.e(f's_memtime s[{70+2*k}:{71+2*k}]')
    if OPT['ts']==4:
        k%=12
        l=a.newlabel('pt'); a.e(f's_cmp_lg_u32 {sItem}, {OPT["raw"]+d}'); a.e(f's_cbranch_scc1 {l} ; nopad')
        a.e(f's_memrealtime s[{70+2*k}:{71+2*k}]'); a.label(l,nopad=True)
def pacc(a,n):
    if OPT['ts']!=3: return
    a.e('s_waitcnt lgkmcnt(0)'); a.lg=[]
    sk=a.newlabel('pa')
    if OPT.get('raw',0):
        a.e(f's_cmp_lg_u32 {sItem}, {OPT["raw"]}'); a.e(f's_cbranch_scc1 {sk}')
        for k in range(n): a.e(f's_mov_b32 s{PACC[k]}, s{70+2*k}')
        a.label(sk)
        return
    a.e(f's_cmp_lt_u32 {sItem}, 6'); a.e(f's_cbranch_scc1 {sk}')
    a.e(f's_sub_u32 s97, s70, s96\ns_add_u32 s{PACC[n-1]}, s{PACC[n-1]}, s97')
    for k in range(n-1):
        a.e(f's_sub_u32 s97, s{72+2*k}, s{70+2*k}\ns_add_u32 s{PACC[k]}, s{PACC[k]}, s97')
    a.label(sk)
    a.e(f's_mov_b32 s96, s{70+2*(n-1)}')
def pdump(a,vT):
    if OPT['ts'] not in (3,4): return
    if OPT['ts']==4:
        a.e('s_waitcnt lgkmcnt(0)')
        for k,r in enumerate(PACC): a.e(f's_mov_b32 s{r}, s{70+2*k}')
    a.e(f's_lshl_b32 s97, {sRole}, 2\ns_add_u32 s97, s97, {sWave}\ns_lshl_b32 s97, s97, 11\ns_add_u32 s97, s97, {TSB}')
    for k,r in enumerate(PACC):
        a.e(f'v_mov_b32 v{vT}, s{r}')
        a.e(f'buffer_store_dword v{vT}, off, {WS}, s97 offset:{4*k}')

sLoc='s21'
def local_setup(a,vA,vB):
    import common
    a.e(f's_lshr_b32 s20, {sRole}, 5')
    common.wait_all_registered(a,vA,vB,stop_slot='s20')
    a.e(f's_cmp_ge_u32 s58, 32\ns_cselect_b32 {sLoc}, 1, 0')
    if OPT.get('slow',0) or not OPT.get('loc',1): a.e(f's_mov_b32 {sLoc}, 0')
def lstore(a,texts):
    if isinstance(texts,str): texts=[texts]
    l1=a.newlabel('ls'); l2=a.newlabel('ls')
    a.e(f's_cmp_eq_u32 {sLoc}, 0'); a.e(f's_cbranch_scc1 {l1} ; nopad')
    for t in texts: a.e(t)
    a.label(l2,nopad=True)
    OOL.append((l1,l2,texts))
OOL=[]
def flush_ool(a):
    for l1,l2,texts in OOL:
        a.label(l1)
        for t in texts: a.e(t+' sc1')
        a.e('s_nop 1'); a.e(f's_branch {l2}')
    OOL.clear(); a.reset_track()
def lpublish(a,vT,sOff,val,srdn=WST):
    a.e(f'v_mov_b32 v{vT}, {val}')
    a.e('s_mov_b64 exec, 1')
    lstore(a,f'buffer_store_dword v{vT}, off, {srdn}, {sOff}')
    a.e('s_mov_b64 exec, -1')

def repoff(a,dst,item,add=0):
    a.e(f's_add_u32 {dst}, {item}, {add}\ns_mul_i32 s59, {dst}, 43\ns_lshr_b32 s59, s59, 7\ns_mul_i32 s59, s59, 3\ns_sub_u32 s59, {dst}, s59')
    a.e(f's_min_u32 s101, {dst}, {PHB-1}\ns_sub_u32 s101, s101, {PHA}\ns_and_b32 s101, s101, 1\ns_cmp_lt_u32 {dst}, {PHA}\ns_cselect_b32 {dst}, s59, s101')
    a.e(f's_cmp_eq_u32 {sLayer}, 0\ns_cselect_b32 {dst}, {dst}, 0\ns_lshl_b32 {dst}, {dst}, 2')

CSTR=32; COVF=4; CDONE=132; CDONE2=136
def wait_init(a,vA,vF,rings=False):
    a.e(f'v_mov_b32 v{vA}, {CDONE2 if rings else CDONE}')
    poll_block(a,vA,64,vF,14,sleep=8,srdn=DBG)
```

```python
from asmb import *
from layout import *
KARG={'x':0,'mem0':8,'q':16,'k':24,'v':32,'o':40,'w1':64,'w2':72,'w3':80,'w4':88,'out':96,'dbg':104,'ws':112}
def magic(d): return (2**32+d-1)//d
def sdiv(a,q,r,x,d,tmp):
    a.e(f's_mul_hi_u32 {q}, {x}, {hex(magic(d))}')
    a.e(f's_mul_i32 {tmp}, {q}, {d}')
    a.e(f's_sub_u32 {r}, {x}, {tmp}')
def srd(a,b,ptr,nbytes):
    a.e(f's_mov_b32 s{b}, s{ptr}\ns_and_b32 s{b+1}, s{ptr+1}, 0xffff\ns_mov_b32 s{b+2}, {hex(nbytes)}\ns_mov_b32 s{b+3}, 0x20000')


def gen_init(a):
    from common import WS,DBG,sRole,sWave,CDONE,CDONE2
    a.e('s_load_dwordx2 s[20:21], s[0:1], 0')
    a.e(f's_lshl_b32 s41, s42, 2\ns_add_u32 s41, s41, {sWave}')
    a.e('v_lshlrev_b32 v2, 4, v0\nv_lshrrev_b32 v4, 5, v0\nv_and_b32 v5, 31, v0\nv_mul_u32_u24 v3, 1280, v5\nv_lshl_add_u32 v3, v4, 3, v3\nv_lshlrev_b32 v5, 3, v5')
    a.e(f's_mov_b32 s43, {sWave}\ns_mul_i32 s44, s42, {32*1280}\ns_mul_i32 s45, s43, 320\ns_add_u32 s44, s44, s45')
    a.e('s_waitcnt lgkmcnt(0)')
    srd(a,24,20,2048*640*2)
    a.reset_track()
    for t in range(5):
        for i in range(4): a.e(f'buffer_load_dwordx2 v[{16+8*t+2*i}:{17+8*t+2*i}], v3, s[24:27], s44 offen offset:{64*t+16*i}',tag=t)
    for i in range(4): a.e(f'v_mov_b32 v{8+i}, -1\nv_mov_b32 v{12+i}, 0')
    a.e(f's_mul_i32 s46, s41, {18*128}\ns_add_u32 s46, s46, {64*KB}\nv_lshlrev_b32 v6, 7, v0\nv_cmp_gt_u32 vcc, 18, v0')
    a.e('s_mov_b64 exec, vcc')
    a.e(f'buffer_store_dwordx4 v[12:15], v6, {WS}, s46 offen sc1')
    a.e('s_mov_b64 exec, -1')
    a.e(f's_mul_i32 s45, s42, {SEGB}\ns_add_u32 s45, s45, {XIN[0]}\ns_mul_i32 s46, s43, {5*2048}\ns_add_u32 s46, s46, s45\ns_mul_i32 s47, s43, 1280\ns_add_u32 s47, s47, s45\ns_add_u32 s47, s47, {STAT}')
    for t in range(5):
        a.wait_vm(t); b=16+8*t
        a.e(f'buffer_store_dwordx4 v[{b}:{b+3}], v2, {WS}, s46 offen sc1\nbuffer_store_dwordx4 v[{b+4}:{b+7}], v2, {WS}, s46 offen offset:1024 sc1\ns_add_u32 s46, s46, 2048')
        r=100+2*t
        a.e(f'v_mov_b32 v{r}, 0\nv_mov_b32 v{r+1}, 0')
        for i in range(8):
            a.e(f'v_lshlrev_b32 v6, 16, v{b+i}\nv_and_b32 v7, 0xffff0000, v{b+i}')
            a.e(f'v_add_f32 v{r}, v{r}, v6\nv_fmac_f32 v{r+1}, v6, v6\nv_add_f32 v{r}, v{r}, v7\nv_fmac_f32 v{r+1}, v7, v7')
        a.e(f'v_mov_b32 v6, v{r}\nv_mov_b32 v7, v{r+1}\nv_permlane32_swap_b32 v{r}, v6\nv_permlane32_swap_b32 v{r+1}, v7\nv_add_f32 v{r}, v{r}, v6\nv_add_f32 v{r+1}, v{r+1}, v7')
        a.e(f'buffer_store_dwordx2 v[{r}:{r+1}], v5, {WS}, s47 offen offset:{256*t} sc1')
    def signal(off):
        a.e('s_waitcnt vmcnt(0)'); a.e('s_barrier')
        l=a.newlabel('init_d')
        a.e(f's_cmp_lg_u32 {sWave}, 0'); a.e(f's_cbranch_scc1 {l}')
        a.e(f'v_mov_b32 v6, 1\ns_mov_b32 s46, {off}\ns_mov_b64 exec, 1')
        a.e(f'buffer_atomic_add v6, off, {DBG}, s46 sc1')
        a.e('s_mov_b64 exec, -1')
        a.label(l); a.reset_track()
    signal(CDONE)
    a.e(f's_lshl_b32 s46, s41, 13\ns_add_u32 s46, s46, {RING}')
    for i in range(8):
        a.e(f'buffer_store_dwordx4 v[8:11], v2, {WS}, s46 offen offset:{(i%4)*1024} sc1')
        if i%4==3: a.e('s_add_u32 s46, s46, 4096')
    signal(CDONE2)
```

```python
import sys
from common import *
from ns import gen_ns
NAME='interleave_layers__memory_aug_recurrent_mem_tr__mixer_s_mlp__prompt'
LDS_BYTES=160*1024
def kd(name,vgpr,acc,sgpr=102):
    return f'''.amdhsa_kernel {name}
  .amdhsa_next_free_vgpr {vgpr}
  .amdhsa_next_free_sgpr {sgpr}
  .amdhsa_accum_offset {acc}
  .amdhsa_group_segment_fixed_size 0
  .amdhsa_kernarg_size 120
  .amdhsa_user_sgpr_count 2
  .amdhsa_user_sgpr_kernarg_segment_ptr 1
  .amdhsa_system_sgpr_workgroup_id_x 1
  .amdhsa_float_denorm_mode_32 3
.end_amdhsa_kernel
'''
WSTART={'qkv':0,'wo':48,'att':68,'w1':76,'w2':79,'w3':82,'w4':89}
def gen_main(a,name,roles):
    a.label('R_chain')
    if 'chain' in roles:
        from chain import gen_chain
        gen_chain(a)
    else: a.e('s_branch L_end')
    a.label('L_fail')
    a.e(f's_lshl_b32 s42, {sRole}, 8\ns_or_b32 s42, s42, {sErr}\ns_lshl_b32 s43, {sItem}, 16\ns_or_b32 s42, s42, s43')
    a.e(f's_lshl_b32 s43, {sErr}, 4\ns_add_u32 s43, s43, 12')
    a.e('s_mov_b64 exec, -1')
    a.e('v_mov_b32 v1, s42\nv_mov_b32 v2, 0')
    a.e(f'buffer_store_dword v1, v2, {DBG}, s43 offen')
    a.label('L_end')
    a.e('s_endpgm')
    a.raw(f'.globl {name}\n.p2align 8\n.type {name},@function')
    a.label(name)
    a.e('s_cmp_ge_u32 s2, 256'); a.e('s_cbranch_scc1 L_end')
    a.e('s_load_dwordx2 s[20:21], s[0:1], 112\ns_load_dwordx2 s[22:23], s[0:1], 96\ns_load_dwordx2 s[24:25], s[0:1], 104\ns_load_dwordx2 s[26:27], s[0:1], 8')
    a.e('v_lshrrev_b32 v1, 6, v0\nv_and_b32 v0, 63, v0')
    a.e(f'v_readfirstlane_b32 {sWave}, v1')
    a.e('s_getreg_b32 s41, hwreg(HW_REG_XCC_ID)\ns_and_b32 s41, s41, 7')
    a.e('s_waitcnt lgkmcnt(0)')
    srd(a,4,20,256*MB); srd(a,8,22,2048*640*2); srd(a,12,24,256); srd(a,16,26,8*640*2)
    a.e(f's_mov_b32 {sItem}, 0')
    cl=a.newlabel('claimed'); got=a.newlabel('got')
    a.e(f'v_mov_b32 v4, {LDS_BYTES-16}')
    a.e(f's_cmp_lg_u32 {sWave}, 0'); a.e(f's_cbranch_scc1 {cl}')
    a.e(f's_mul_i32 s42, s41, {CSTR}')
    a.e('v_mov_b32 v2, 1\nv_mov_b32 v3, 0')
    a.e('s_mov_b64 exec, 1')
    a.e(f'buffer_atomic_add v2, v3, {DBG}, s42 offen sc0 sc1')
    a.e('s_waitcnt vmcnt(0)')
    a.e('s_mov_b64 exec, -1')
    a.e('v_readfirstlane_b32 s43, v2')
    a.e('s_lshl_b32 s44, s41, 5\ns_add_u32 s44, s44, s43')
    a.e('s_cmp_lt_u32 s43, 32'); a.e(f's_cbranch_scc1 {got}')
    a.e('v_mov_b32 v2, 1')
    a.e('s_mov_b64 exec, 1')
    a.e(f's_mov_b32 s42, {COVF}')
    a.e(f'buffer_atomic_add v2, v3, {DBG}, s42 offen sc0 sc1')
    a.e('s_waitcnt vmcnt(0)')
    a.e('s_mov_b64 exec, -1')
    a.e('v_readfirstlane_b32 s43, v2')
    wait_all_registered(a,2,3)
    a.e('s_mov_b32 s44, 255')
    for x in range(8):
        a.e(f's_min_u32 s45, s{50+x}, 32\ns_sub_u32 s46, 32, s45\ns_add_u32 s45, s45, s43\ns_add_u32 s45, s45, {32*x}')
        a.e('s_cmp_lt_u32 s43, s46\ns_cselect_b32 s44, s45, s44\ns_sub_u32 s43, s43, s46')
    a.label(got)
    a.e('v_mov_b32 v2, s44')
    a.e('ds_write_b32 v4, v2')
    a.e('s_waitcnt lgkmcnt(0)')
    a.label(cl)
    a.e('s_barrier')
    a.e('ds_read_b32 v2, v4')
    a.e('s_waitcnt lgkmcnt(0)')
    a.e(f'v_readfirstlane_b32 {sRole}, v2')
    a.e('s_barrier')
    a.reset_track()
    stamp(a,2,None,7)
    a.e(f's_cmp_lt_u32 {sRole}, 32'); a.e('s_cbranch_scc1 R_chain')
    w1l=a.newlabel('wk')
    a.e(f's_cmp_ge_u32 {sRole}, 64'); a.e(f's_cbranch_scc1 {w1l}')
    from pre import gen_init
    a.e(f's_sub_u32 s42, {sRole}, 32')
    a.label('L_init')
    gen_init(a)
    a.e(f's_cmp_ge_u32 {sRole}, 64'); a.e('s_cbranch_scc1 L_steady')
    wait_init(a,2,3)
    a.e(f'v_mov_b32 v2, {FLAG(0,ST_PX)}')
    poll_block(a,2,1,3,14,sleep=8)
    a.e('s_branch R_chain')
    a.label(w1l)
    a.e(f's_sub_u32 s42, {sRole}, 64\ns_mov_b32 {sLayer}, 0')
    lo=0; cnt=[0,0,0]; islot=32
    for nm,L,n,base,rep in STEADY:
        if rep<0:
            ni={'att':n,'wo':16}.get(nm,0)
            if ni:
                nx=a.newlabel('dsp')
                a.e(f's_cmp_ge_u32 s42, {lo+ni}'); a.e(f's_cbranch_scc1 {nx}')
                a.e(f's_add_u32 s42, s42, {islot-lo}'); a.e('s_branch L_init')
                a.label(nx); islot+=ni
            if ni<n: a.e(f's_cmp_lt_u32 s42, {lo+n}'); a.e('s_cbranch_scc1 L_steady')
        else:
            b=base if rep==0 else cnt[rep]; cnt[rep]+=n
            a.e(f's_mov_b32 s43, {b-lo}\ns_mov_b32 s65, {rep}\ns_cmp_lt_u32 s42, {lo+n}'); a.e('s_cbranch_scc1 P1_go')
        lo+=n
    assert islot==64
    a.label('P1_go')
    a.e(f's_add_u32 s42, s42, s43\ns_lshl_b32 s41, s42, 2\ns_add_u32 s41, s41, {sWave}')
    a.e('s_cmp_ge_u32 s42, 32'); a.e('s_cbranch_scc1 R_v')
    gen_ns(a,'qk')
    a.label('R_v'); gen_ns(a,'v')
    a.label('L_steady')
    a.e('s_barrier')
    stamp(a,2,None,6,'0')
    a.e(f's_sub_u32 s42, {sRole}, 64')
    lo=0
    for nm,L,n,base,rep in STEADY:
        tgt='L_end' if (nm in('idle','qkv') or nm not in roles) else f'R_{nm}'
        a.e(f's_mov_b32 s43, {base-lo}\ns_mov_b32 {sLayer}, {L}\ns_cmp_lt_u32 s42, {lo+n}'); a.e(f's_cbranch_scc1 {tgt}')
        lo+=n
    a.e('s_branch L_end')
    for nm in ('wo','att','w1','w2','w3','w4'):
        if nm not in roles: continue
        a.label(f'R_{nm}')
        a.e('s_add_u32 s42, s42, s43')
        if nm in('w1','w2','w3'):
            a.e(f's_lshl_b32 s41, s42, 2\ns_add_u32 s41, s41, {sWave}')
            gen_ns(a,nm); flush_ool(a)
        elif nm=='att':
            from att import gen_att
            gen_att(a)
        else:
            from ks import gen_ks
            gen_ks(a,nm); flush_ool(a)
def wait_all_registered(a,vF,vA,stop_slot=None):
    L=a.newlabel('reg'); D=a.newlabel('regd')
    a.e(f'v_and_b32 v{vA}, 7, v0\nv_mul_u32_u24 v{vA}, {CSTR}, v{vA}')
    a.e(f's_mov_b32 {sCnt}, 0')
    a.label(L)
    a.e(f'buffer_load_dword v{vF}, v{vA}, {DBG}, 0 offen sc1')
    a.e('s_waitcnt vmcnt(0)')
    for x in range(8): a.e(f'v_readlane_b32 s{50+x}, v{vF}, {x}')
    if stop_slot:
        a.e(f'v_readlane_b32 s58, v{vF}, {stop_slot}')
        a.e('s_cmp_ge_u32 s58, 32'); a.e(f's_cbranch_scc1 {D}')
    a.e('s_add_u32 s59, s50, s51')
    for x in range(2,8): a.e(f's_add_u32 s59, s59, s{50+x}')
    a.e('s_cmp_ge_u32 s59, 256'); a.e(f's_cbranch_scc1 {D}')
    a.e('s_sleep 2')
    a.e(f's_add_u32 {sCnt}, {sCnt}, 1\ns_cmp_lt_u32 {sCnt}, {POLL_LIMIT}'); a.e(f's_cbranch_scc1 {L}')
    a.e(f's_mov_b32 {sErr}, 15'); a.e('s_branch L_fail')
    a.label(D); a.vm=[]
import common; common.wait_all_registered=wait_all_registered
def build(roles,path):
    a=Asm()
    gen_main(a,NAME+'_kernel',roles)
    hdr=open('cdna_kernels/'+NAME+'.s.ref').read().split('; Override')[0]
    s=hdr+f'; @launch kernel={NAME}_kernel grid=(256,1,1) block=(256,1,1) lds={LDS_BYTES}\n' if not OPT.get('single',0) else hdr+f'; @launch grid=(256,1,1) block=(256,1,1) lds={LDS_BYTES}\n'
    s+='.amdgcn_target "amdgcn-amd-amdhsa--gfx950"\n.text\n'+a.text()
    s+='.section .rodata,"a"\n.p2align 6\n'+kd(NAME+'_kernel',512,256)
    open(path,'w').write(s)
    print('wrote',path,len(s),'bytes')
if __name__=='__main__':
    roles=sys.argv[1].split(',')
    for o in sys.argv[3:]:
        k,v=o.split('='); OPT[k]=int(v)
    OPT['roles']=roles
    build(roles,sys.argv[2])
```
